```python
import torch

def _softmax(x, axis=-1):
    return torch.softmax(x, dim=axis)
def _gelu(x):
    return torch.nn.functional.gelu(x, approximate="tanh")
def _silu(x):
    return torch.nn.functional.silu(x)
def _sigmoid(x):
    return torch.sigmoid(x)
def _layernorm(x, axis=-1, eps=1e-5):
    m = x.mean(dim=axis, keepdim=True)
    v = x.var(dim=axis, keepdim=True, unbiased=False)
    return (x - m) / torch.sqrt(v + eps)
def _scatter_add(tgt, idx, src, axis=0):
    return tgt.clone().index_add_(axis, idx, src)
def _segment_sum(src, seg, n):
    out = torch.zeros((n,) + src.shape[1:], dtype=src.dtype)
    return out.index_add_(0, seg, src)
def _pad(x, pw):
    flat = tuple(v for pair in reversed(pw) for v in pair)
    return torch.nn.functional.pad(x, flat)

kernel_name = 'gated_mix__ssm_conv_h3__dense_activation_mish__prompt'

def setup_inputs():

    _w = (lambda a: (lambda t: t.to(torch.bfloat16) if t.is_floating_point() else t)(torch.as_tensor(a)))
    def _A_setup():
        B, S, D = 1, 2048, 448
        ks = 4
        return {
            "q": _w((lambda *s: torch.randn(*s, dtype=torch.bfloat16) * 0.05)(B, S, D)),
            "k": _w((lambda *s: torch.randn(*s, dtype=torch.bfloat16) * 0.4)(B, S, D)),
            "v": _w((lambda *s: torch.randn(*s, dtype=torch.bfloat16) * 0.2)(B, S, D)),
            "shift_k": _w((lambda *s: torch.randn(*s, dtype=torch.bfloat16) * 0.4)(D, ks) * 0.5),
            "ssm_k": _w((lambda *s: torch.randn(*s, dtype=torch.bfloat16) * 0.4)(D, S) * (1.0 / S ** 0.5)),
            "ssm_D": _w((lambda *s: torch.randn(*s, dtype=torch.bfloat16) * 0.2)(D)),
        }
    _A_in = _A_setup()

    def _B_setup():
        B, S, D, F = 1, 2048, 448, 1792
        return {
            "x": _w((lambda *s: torch.randn(*s, dtype=torch.bfloat16) * 0.05)(B, S, D)),
            "w1": _w((lambda *s: torch.randn(*s, dtype=torch.bfloat16) * 3.2)(D, F) * (D ** -0.5)),
            "b1": _w((lambda *s: torch.randn(*s, dtype=torch.bfloat16) * 0.05)(F)),
            "w2": _w((lambda *s: torch.randn(*s, dtype=torch.bfloat16) * 0.05)(F, D) * (F ** -0.5)),
        }
    _B_in = _B_setup()

    return {
        "A_q": _A_in["q"],
        "A_k": _A_in["k"],
        "A_v": _A_in["v"],
        "A_shift_k": _A_in["shift_k"],
        "A_ssm_k": _A_in["ssm_k"],
        "A_ssm_D": _A_in["ssm_D"],
        "B_x": _B_in["x"],
        "B_w1": _B_in["w1"],
        "B_b1": _B_in["b1"],
        "B_w2": _B_in["w2"],
        "gate_w": _w((lambda *s: torch.randn(*s, dtype=torch.bfloat16) * 0.05)(448) * 16.0),
    }

def reference(A_q, A_k, A_v, A_shift_k, A_ssm_k, A_ssm_D, B_x, B_w1, B_b1, B_w2, gate_w):
    def _A_ref(q, k, v, shift_k, ssm_k, ssm_D):
        B, S, D = q.shape
        ks = shift_k.shape[-1]
        k_pad = _pad(k, ((0, 0), (ks - 1, 0), (0, 0)))
        k_shift = torch.zeros_like(k)
        for t in range(ks):
            k_shift = k_shift + k_pad[:, t:t + S, :] * shift_k[:, ks - 1 - t][None, None, :]
        kv = k_shift * v
        L = 2 * S
        kv_pad = _pad(kv, ((0, 0), (0, S), (0, 0)))
        kf_pad = _pad(ssm_k, ((0, 0), (0, S)))
        kv_f = (lambda x, axes=(-2,-1): torch.fft.rfft2(x.float(), dim=axes))(kv_pad[:, None, :, :], axes=(1, 2))
        kf_f = (lambda x, axes=(-2,-1): torch.fft.rfft2(x.float(), dim=axes))(kf_pad[:, None, :], axes=(1, 2))
        kf_f = (lambda x, *d: x.permute(*d))(kf_f, 1, 2, 0)
        y_f = kv_f * kf_f[None, :, :, :]
        y = (lambda x, s, axes=(-2,-1): torch.fft.irfft2(x, s=s, dim=axes).to(torch.bfloat16))(y_f, (1, L), axes=(1, 2))[:, 0, :S, :]
        y = y + kv * ssm_D[None, None, :]
        return q * y

    def _B_ref(x, w1, b1, w2):
        h = torch.einsum("bsd,df->bsf", x, w1) + b1
        sp = torch.log1p(torch.exp(-torch.abs(h))) + torch.where(h > 0, h, torch.zeros_like(h))
        act = h * torch.tanh(sp)
        return torch.einsum("bsf,fd->bsd", act, w2)

    x = A_q
    g = _sigmoid((x * gate_w).sum(-1, keepdims=True))
    a = _A_ref(x, A_k, A_v, A_shift_k, A_ssm_k, A_ssm_D)
    b = _B_ref(x, B_w1, B_b1, B_w2)
    return g * a + (1 - g) * b
```

```python
class Asm:
    def __init__(self):
        self.lines = []
        self.nlab = 0
    def __call__(self, s, *a):
        for ln in s.strip("\n").split("\n"):
            ln = ln.strip()
            if ln:
                self.lines.append("    " + ln)
    def label(self, l):
        self.lines.append(l + ":")
    def newlabel(self, p="L"):
        self.nlab += 1
        return f"{p}_{self.nlab}"
    def raw(self, s):
        self.lines.append(s)
    def text(self):
        return "\n".join(self.lines) + "\n"

def vr(b, n=1):
    return f"v{b}" if n == 1 else f"v[{b}:{b+n-1}]"
def sr(b, n=1):
    return f"s{b}" if n == 1 else f"s[{b}:{b+n-1}]"

def kd(name, vgpr, sgpr=102):
    acc = (vgpr + 3) // 4 * 4
    return f""".p2align 6
.amdhsa_kernel {name}
  .amdhsa_next_free_vgpr {vgpr}
  .amdhsa_next_free_sgpr {sgpr}
  .amdhsa_accum_offset {acc}
  .amdhsa_group_segment_fixed_size 0
  .amdhsa_kernarg_size 112
  .amdhsa_user_sgpr_count 2
  .amdhsa_user_sgpr_kernarg_segment_ptr 1
  .amdhsa_system_sgpr_workgroup_id_x 1
  .amdhsa_float_denorm_mode_32 3
.end_amdhsa_kernel
"""
```

```python
import sys
sys.path.insert(0, "dev")
from genlib import Asm, vr, sr, kd

NWG = 224
WS_ACT = 0
WS_KVT = 8 << 20
WS_Y2T = 10 << 20
WS_G = 12 << 20
WS_SIZE = 16 << 20

S_ID = 2
S_WAVE = 3
S_T0, S_T1, S_T2, S_T3 = 4, 5, 6, 7
S_RB, S_CB = 8, 9
S_RBK, S_CG = 10, 11
S_SOX, S_SOW = 12, 13
S_M0 = 14
S_T4 = 15
P = 16
SRD_Q, SRD_K, SRD_V, SRD_SH, SRD_W1, SRD_B1, SRD_GW, SRD_WS = 44, 48, 52, 56, 60, 64, 68, 72
SRD_SK, SRD_SD, SRD_W2, SRD_OUT, SRD_QG = 76, 80, 84, 88, 92
PTR = dict(q=16, k=18, v=20, sh=22, sk=24, sd=26, bx=28, w1=30, b1=32, w2=34, gw=36, out=38, dbg=40, ws=42)
SIZE = dict(q=2048*448*2, k=2048*448*2, v=2048*448*2, sh=448*4*2, sk=448*2048*2, sd=448*2, w1=448*1792*2,
            b1=1792*2, w2=1792*448*2, gw=448*2, out=2048*448*2, ws=WS_SIZE)
OOB = 0x7fff0000


class VM:
    def __init__(self, a):
        self.a = a
        self.ops = []
    def issue(self, tag):
        self.ops.append(tag)
    def wait(self, tag):
        if tag not in self.ops:
            return
        idx = max(i for i, t in enumerate(self.ops) if t == tag)
        n = len(self.ops) - 1 - idx
        assert n < 63
        self.a(f"s_waitcnt vmcnt({n})")
        self.ops = self.ops[idx + 1:]
    def wait_all(self):
        self.a("s_waitcnt vmcnt(0)")
        self.ops = []


def srd(a, dst, name, size=None):
    p = PTR[name]
    a(f"""
    s_mov_b32 s{dst}, s{p}
    s_and_b32 s{dst+1}, s{p+1}, 0xffff
    s_mov_b32 s{dst+2}, {size if size is not None else SIZE[name]}
    s_mov_b32 s{dst+3}, 0x00020000
    """)


def prologue(a, name, endlabel):
    a.raw(f".globl {name}\n.p2align 8\n.type {name},@function")
    a.label(name)
    a(f"""
    s_cmp_ge_u32 s2, {NWG}
    s_cbranch_scc1 {endlabel}
    s_load_dwordx16 s[16:31], s[0:1], 0
    s_load_dwordx8 s[32:39], s[0:1], 64
    s_load_dwordx4 s[40:43], s[0:1], 96
    v_lshrrev_b32 v2, 6, v0
    v_and_b32 v1, 63, v0
    s_nop 0
    v_readfirstlane_b32 s{S_WAVE}, v2
    """)


def div7(a, q, r, x):
    a(f"""
    s_mul_i32 s{q}, s{x}, 9363
    s_lshr_b32 s{q}, s{q}, 16
    s_mul_i32 s{r}, s{q}, 7
    s_sub_u32 s{r}, s{x}, s{r}
    """)


def phase1(a, SC=""):
    vm = VM(a)
    STG = 32768
    LDS_T = 4 * STG
    a(f"""
    s_and_b32 s{S_T0}, s2, 7
    s_lshr_b32 s{S_T1}, s2, 3
    """)
    div7(a, S_T2, S_T3, S_T1)
    a(f"""
    s_lshr_b32 s{S_RB}, s{S_T0}, 1
    s_lshl_b32 s{S_RB}, s{S_RB}, 2
    s_add_u32 s{S_RB}, s{S_RB}, s{S_T2}
    s_and_b32 s{S_CB}, s{S_T0}, 1
    s_mul_i32 s{S_CB}, s{S_CB}, 7
    s_add_u32 s{S_CB}, s{S_CB}, s{S_T3}
    """)
    div7(a, S_RBK, S_CG, S_ID)
    a("s_waitcnt lgkmcnt(0)")
    srd(a, SRD_Q, "q"); srd(a, SRD_K, "k"); srd(a, SRD_V, "v"); srd(a, SRD_SH, "sh")
    srd(a, SRD_W1, "w1"); srd(a, SRD_B1, "b1"); srd(a, SRD_GW, "gw"); srd(a, SRD_WS, "ws")
    srd(a, SRD_QG, "q")
    a(f"""
    s_cmp_lt_u32 s2, 128
    s_cselect_b32 s{SRD_QG+2}, s{SRD_QG+2}, 0
    """)
    VK = 128
    VV = 144
    VW = 148
    VGX = 164
    VGW = 172
    VB = 112
    ACC = 32
    FR = 64
    a(f"""
    v_and_b32 v2, 7, v0
    v_lshrrev_b32 v3, 3, v0
    s_lshl_b32 s{S_T0}, s{S_RBK}, 6
    v_add_u32 v4, s{S_T0}, v3
    s_lshl_b32 s{S_T1}, s{S_CG}, 7
    v_lshl_add_u32 v5, v2, 4, s{S_T1}
    s_movk_i32 s{S_T2}, 896
    v_mul_lo_u32 v6, v4, s{S_T2}
    v_add_u32 v6, v6, v5
    """)
    a(f"""
    v_mov_b32 v10, {OOB}
    v_add_u32 v7, -896, v6
    v_cmp_le_u32 vcc, 1, v4
    v_add_u32 v8, -1792, v6
    v_cmp_le_u32 s[{S_T2}:{S_T3}], 2, v4
    v_cndmask_b32 v7, v10, v7, vcc
    v_add_u32 v9, -2688, v6
    v_cmp_le_u32 vcc, 3, v4
    v_cndmask_b32 v8, v10, v8, s[{S_T2}:{S_T3}]
    s_nop 0
    v_cndmask_b32 v9, v10, v9, vcc
    """)
    a(f"buffer_load_dwordx4 {vr(VK,4)}, v6, s[{SRD_K}:{SRD_K+3}], 0 offen"); vm.issue("kv")
    a(f"buffer_load_dwordx4 {vr(VK+4,4)}, v7, s[{SRD_K}:{SRD_K+3}], 0 offen"); vm.issue("kv")
    a(f"buffer_load_dwordx4 {vr(VK+8,4)}, v8, s[{SRD_K}:{SRD_K+3}], 0 offen"); vm.issue("kv")
    a(f"buffer_load_dwordx4 {vr(VK+12,4)}, v9, s[{SRD_K}:{SRD_K+3}], 0 offen"); vm.issue("kv")
    a(f"buffer_load_dwordx4 {vr(VV,4)}, v6, s[{SRD_V}:{SRD_V+3}], 0 offen"); vm.issue("kv")
    a(f"""
    s_lshl_b32 s{S_T1}, s{S_CG}, 9
    v_lshl_add_u32 v11, v2, 6, s{S_T1}
    """)
    for j in range(4):
        a(f"buffer_load_dwordx4 {vr(VW+4*j,4)}, v11, s[{SRD_SH}:{SRD_SH+3}], 0 offen offset:{16*j}"); vm.issue("kv")
    VXE, VXO, VWO = 12, 13, 14
    a(f"""
    v_lshrrev_b32 v2, 3, v1
    s_lshl_b32 s{S_T0}, s{S_WAVE}, 4
    v_add_u32 v2, s{S_T0}, v2
    s_movk_i32 s{S_T2}, 896
    v_mul_lo_u32 v2, v2, s{S_T2}
    v_and_b32 v3, 7, v1
    v_lshrrev_b32 v4, 4, v1
    v_xor_b32 v3, v3, v4
    v_lshl_add_u32 v{VXE}, v3, 4, v2
    v_xor_b32 v3, 4, v3
    v_lshl_add_u32 v{VXO}, v3, 4, v2
    v_add_u32 v{VXO}, {8*896}, v{VXO}
    s_lshl_b32 s{S_T0}, s{S_WAVE}, 3
    v_add_u32 v2, s{S_T0}, v4
    s_movk_i32 s{S_T2}, 3584
    v_mul_lo_u32 v2, v2, s{S_T2}
    v_and_b32 v3, 15, v1
    v_lshlrev_b32 v5, 2, v4
    v_xor_b32 v3, v3, v5
    v_lshl_add_u32 v{VWO}, v3, 4, v2
    s_mul_i32 s{S_SOX}, s{S_RB}, {128*896}
    s_lshl_b32 s{S_SOW}, s{S_CB}, 8
    s_lshl_b32 s{S_M0}, s{S_WAVE}, 11
    """)

    def issue_chunk(kc):
        st = kc % 4
        tag = f"c{kc}"
        a(f"""
        s_add_u32 m0, s{S_M0}, {st*STG}
        s_add_u32 s{S_T0}, s{S_SOX}, {128*kc}
        buffer_load_dwordx4 v{VXE}, s[{SRD_Q}:{SRD_Q+3}], s{S_T0} offen lds
        s_add_u32 m0, s{S_M0}, {st*STG+1024}
        s_add_u32 s{S_T1}, s{S_SOW}, {64*kc*3584}
        buffer_load_dwordx4 v{VXO}, s[{SRD_Q}:{SRD_Q+3}], s{S_T0} offen lds
        s_add_u32 m0, s{S_M0}, {st*STG+16384}
        s_add_u32 s{S_T0}, s{S_SOW}, {64*kc*3584+4*3584}
        buffer_load_dwordx4 v{VWO}, s[{SRD_W1}:{SRD_W1+3}], s{S_T1} offen lds
        s_add_u32 m0, s{S_M0}, {st*STG+16384+1024}
        s_nop 0
        buffer_load_dwordx4 v{VWO}, s[{SRD_W1}:{SRD_W1+3}], s{S_T0} offen lds
        """)
        for _ in range(4):
            vm.issue(tag)

    issue_chunk(0)
    a(f"""
    v_lshrrev_b32 v2, 5, v1
    s_lshl_b32 s{S_T0}, s2, 4
    s_lshl_b32 s{S_T1}, s{S_WAVE}, 1
    s_add_u32 s{S_T0}, s{S_T0}, s{S_T1}
    v_add_u32 v15, s{S_T0}, v2
    s_movk_i32 s{S_T2}, 896
    v_mul_lo_u32 v2, v15, s{S_T2}
    v_and_b32 v3, 31, v1
    v_lshlrev_b32 v4, 4, v3
    v_cmp_gt_u32 vcc, 28, v3
    v_add_u32 v2, v2, v4
    s_nop 0
    v_cndmask_b32 v2, v10, v2, vcc
    v_cndmask_b32 v4, v10, v4, vcc
    """)
    a(f"buffer_load_dwordx4 {vr(VGX,4)}, v2, s[{SRD_QG}:{SRD_QG+3}], 0 offen"); vm.issue("g")
    a(f"buffer_load_dwordx4 {vr(VGX+4,4)}, v2, s[{SRD_QG}:{SRD_QG+3}], 0 offen offset:448"); vm.issue("g")
    a(f"buffer_load_dwordx4 {vr(VGW,4)}, v4, s[{SRD_GW}:{SRD_GW+3}], 0 offen"); vm.issue("g")
    a(f"buffer_load_dwordx4 {vr(VGW+4,4)}, v4, s[{SRD_GW}:{SRD_GW+3}], 0 offen offset:448"); vm.issue("g")
    a(f"""
    s_and_b32 s{S_T0}, s{S_WAVE}, 1
    s_lshl_b32 s{S_T0}, s{S_T0}, 7
    s_lshl_b32 s{S_T1}, s{S_CB}, 8
    s_add_u32 s{S_T0}, s{S_T0}, s{S_T1}
    v_lshrrev_b32 v2, 5, v1
    v_lshl_add_u32 v2, v2, 3, s{S_T0}
    """)
    for i in range(8):
        a(f"buffer_load_dwordx2 {vr(VB+2*i,2)}, v2, s[{SRD_B1}:{SRD_B1+3}], 0 offen offset:{16*i}"); vm.issue("b")
    issue_chunk(1); issue_chunk(2); issue_chunk(3)
    VBA = 16
    VAA = 24
    a(f"""
    s_lshr_b32 s{S_T0}, s{S_WAVE}, 1
    s_lshl_b32 s{S_T0}, s{S_T0}, 5
    v_and_b32 v2, 31, v1
    v_add_u32 v2, s{S_T0}, v2
    v_lshrrev_b32 v3, 5, v1
    v_bfe_u32 v4, v2, 1, 3
    v_xor_b32 v3, v3, v4
    v_lshlrev_b32 v3, 4, v3
    v_lshl_add_u32 v{VBA}, v2, 7, v3
    v_xor_b32 v{VBA+1}, 32, v{VBA}
    v_xor_b32 v{VBA+2}, 64, v{VBA}
    v_xor_b32 v{VBA+3}, 0x60, v{VBA}
    v_add_u32 v{VBA+4}, 0x10000, v{VBA}
    v_add_u32 v{VBA+5}, 0x10000, v{VBA+1}
    v_add_u32 v{VBA+6}, 0x10000, v{VBA+2}
    v_add_u32 v{VBA+7}, 0x10000, v{VBA+3}
    """)
    a(f"""
    v_bfe_u32 v2, v1, 4, 1
    v_lshrrev_b32 v3, 5, v1
    v_bfe_u32 v4, v1, 2, 2
    v_and_b32 v5, 3, v1
    v_lshl_add_u32 v6, v3, 3, v4
    v_lshlrev_b32 v6, 8, v6
    s_and_b32 s{S_T0}, s{S_WAVE}, 1
    s_lshl_b32 s{S_T0}, s{S_T0}, 3
    v_lshl_add_u32 v7, v2, 1, s{S_T0}
    v_lshrrev_b32 v8, 1, v5
    v_add_u32 v7, v7, v8
    v_lshlrev_b32 v8, 2, v4
    v_xor_b32 v7, v7, v8
    v_lshl_add_u32 v6, v7, 4, v6
    v_and_b32 v5, 1, v5
    v_lshl_add_u32 v{VAA}, v5, 3, v6
    v_xor_b32 v{VAA+1}, 64, v{VAA}
    v_add_u32 v{VAA+2}, 0x10000, v{VAA}
    v_add_u32 v{VAA+3}, 0x10000, v{VAA+1}
    """)
    vm.wait("kv")
    T = 180
    for d in range(4):
        c0, c1 = 2*d, 2*d+1
        for j in range(4):
            for ci, c in enumerate((c0, c1)):
                src = VW + 2*c + (j >> 1)
                if j & 1:
                    a(f"v_and_b32 v{T+2*j+ci}, 0xffff0000, v{src}")
                else:
                    a(f"v_lshlrev_b32 v{T+2*j+ci}, 16, v{src}")
        for j in range(4):
            a(f"v_lshlrev_b32 v{T+8+2*j}, 16, v{VK+4*j+d}")
            a(f"v_and_b32 v{T+8+2*j+1}, 0xffff0000, v{VK+4*j+d}")
        a(f"v_lshlrev_b32 v{T+16}, 16, v{VV+d}")
        a(f"v_and_b32 v{T+17}, 0xffff0000, v{VV+d}")
        a(f"v_pk_mul_f32 {vr(T+18,2)}, {vr(T+8+6,2)}, {vr(T+6,2)}")
        a(f"v_pk_fma_f32 {vr(T+18,2)}, {vr(T+8+4,2)}, {vr(T+4,2)}, {vr(T+18,2)}")
        a(f"v_pk_fma_f32 {vr(T+18,2)}, {vr(T+8+2,2)}, {vr(T+2,2)}, {vr(T+18,2)}")
        a(f"v_pk_fma_f32 {vr(T+18,2)}, {vr(T+8,2)}, {vr(T,2)}, {vr(T+18,2)}")
        a(f"v_pk_mul_f32 {vr(T+18,2)}, {vr(T+18,2)}, {vr(T+16,2)}")
        a(f"v_cvt_pk_bf16_f32 v{T+20+d}, v{T+18}, v{T+19}")
    a(f"""
    v_lshrrev_b32 v2, 3, v0
    v_sub_u32 v2, 63, v2
    v_and_b32 v3, 7, v0
    v_lshlrev_b32 v3, 4, v3
    v_lshl_add_u32 v2, v2, 7, v3
    v_add_u32 v2, {LDS_T}, v2
    ds_write_b128 v2, {vr(T+20,4)}
    """)
    vm.wait("g")
    a(f"v_mov_b32 v{T+4}, 0")
    for d in range(8):
        a(f"""
        v_lshlrev_b32 v{T}, 16, v{VGX+d}
        v_and_b32 v{T+1}, 0xffff0000, v{VGX+d}
        v_lshlrev_b32 v{T+2}, 16, v{VGW+d}
        v_and_b32 v{T+3}, 0xffff0000, v{VGW+d}
        v_pk_mul_f32 {vr(T,2)}, {vr(T,2)}, {vr(T+2,2)}
        v_cvt_pk_bf16_f32 v{T}, v{T}, v{T+1}
        v_lshlrev_b32 v{T+1}, 16, v{T}
        v_and_b32 v{T}, 0xffff0000, v{T}
        v_add_f32 v{T+4}, v{T+4}, v{T+1}
        v_add_f32 v{T+4}, v{T+4}, v{T}
        """)
    a(f"""
    s_nop 1
    v_add_f32_dpp v{T+4}, v{T+4}, v{T+4} quad_perm:[1,0,3,2] row_mask:0xf bank_mask:0xf
    s_nop 1
    v_add_f32_dpp v{T+4}, v{T+4}, v{T+4} quad_perm:[2,3,0,1] row_mask:0xf bank_mask:0xf
    s_nop 1
    v_add_f32_dpp v{T+4}, v{T+4}, v{T+4} row_half_mirror row_mask:0xf bank_mask:0xf
    s_nop 1
    v_add_f32_dpp v{T+4}, v{T+4}, v{T+4} row_mirror row_mask:0xf bank_mask:0xf
    v_mov_b32 v{T+5}, v{T+4}
    s_nop 1
    v_permlane16_swap_b32 v{T+4}, v{T+5}
    s_nop 1
    v_add_f32 v{T+4}, v{T+4}, v{T+5}
    v_cvt_pk_bf16_f32 v{T+4}, v{T+4}, v{T+4}
    v_lshlrev_b32 v{T+4}, 16, v{T+4}
    v_mul_f32 v{T+4}, 0xbfb8aa3b, v{T+4}
    v_exp_f32 v{T+4}, v{T+4}
    s_nop 0
    v_add_f32 v{T+4}, 1.0, v{T+4}
    v_rcp_f32 v{T+4}, v{T+4}
    s_nop 0
    v_cvt_pk_bf16_f32 v{T+4}, v{T+4}, v{T+4}
    v_lshlrev_b32 v{T+4}, 16, v{T+4}
    v_and_b32 v2, 31, v1
    v_cmp_eq_u32 vcc, 0, v2
    v_lshlrev_b32 v3, 2, v15
    v_add_u32 v3, {WS_G}, v3
    s_cmp_lt_u32 s2, 128
    s_cselect_b64 vcc, vcc, 0
    v_cndmask_b32 v3, v10, v3, vcc
    buffer_store_dword v{T+4}, v3, s[{SRD_WS}:{SRD_WS+3}], 0 offen {SC}
    """)
    vm.issue("gst")
    vm.wait("b")
    for ft in range(2):
        for g in range(4):
            for jj in range(2):
                src = VB + 2*(4*ft+g) + jj
                a(f"v_lshlrev_b32 v{ACC+16*ft+4*g+2*jj}, 16, v{src}")
                a(f"v_and_b32 v{ACC+16*ft+4*g+2*jj+1}, 0xffff0000, v{src}")
    for kc in range(7):
        st = kc % 4
        vm.wait(f"c{kc}")
        a("s_waitcnt lgkmcnt(0)")
        a("s_barrier")
        if 1 <= kc and kc + 3 <= 6:
            issue_chunk(kc + 3)
        hi = st >> 1
        base = (st & 1) * STG
        for ks in range(4):
            fb = FR + 12*ks
            a(f"ds_read_b128 {vr(fb+8,4)}, v{VBA+4*hi+ks} offset:{base}")
            for ft in range(2):
                for part in range(2):
                    a(f"ds_read_b64_tr_b16 {vr(fb+4*ft+2*part,2)}, v{VAA+2*hi+ft} offset:{base+16384+4096*ks+1024*part}")
        if kc == 0:
            a(f"""
            s_lshr_b32 s{S_T0}, s{S_WAVE}, 2
            s_lshl_b32 s{S_T0}, s{S_T0}, 2
            v_lshrrev_b32 v2, 4, v1
            v_add_u32 v2, s{S_T0}, v2
            v_bfe_u32 v3, v1, 2, 2
            v_lshl_add_u32 v3, v2, 3, v3
            v_lshlrev_b32 v3, 7, v3
            v_and_b32 v4, 3, v1
            s_and_b32 s{S_T1}, s{S_WAVE}, 3
            s_lshl_b32 s{S_T2}, s{S_T1}, 5
            s_add_u32 s{S_T2}, s{S_T2}, {LDS_T}
            v_lshl_add_u32 v4, v4, 3, s{S_T2}
            v_add_u32 v3, v3, v4
            ds_read_b64_tr_b16 {vr(T,2)}, v3
            ds_read_b64_tr_b16 {vr(T+2,2)}, v3 offset:512
            """)
            a(f"""
            s_lshl_b32 s{S_T2}, s{S_CG}, 6
            s_lshl_b32 s{S_T1}, s{S_T1}, 4
            s_add_u32 s{S_T2}, s{S_T2}, s{S_T1}
            v_and_b32 v4, 15, v1
            v_add_u32 v4, s{S_T2}, v4
            v_lshlrev_b32 v4, 12, v4
            v_lshl_add_u32 v4, v2, 4, v4
            s_lshl_b32 s{S_T1}, s{S_RBK}, 7
            s_sub_u32 s{S_T1}, {WS_KVT + 1984*2}, s{S_T1}
            """)
        n = 20 + (2 if kc == 0 else 0)
        for ks in range(4):
            fb = FR + 12*ks
            for ft in range(2):
                done = 5*ks + 1 + 2*(ft+1)
                a(f"s_waitcnt lgkmcnt({min(15, n - done)})")
                a(f"v_mfma_f32_32x32x16_bf16 {vr(ACC+16*ft,16)}, {vr(fb+4*ft,4)}, {vr(fb+8,4)}, {vr(ACC+16*ft,16)}")
        if kc == 0:
            a("s_waitcnt lgkmcnt(0)")
            a(f"buffer_store_dwordx4 {vr(T,4)}, v4, s[{SRD_WS}:{SRD_WS+3}], s{S_T1} offen {SC}")
            vm.issue("kvst")
    a(f"""
    s_lshr_b32 s{S_T0}, s{S_WAVE}, 1
    s_lshl_b32 s{S_T1}, s{S_RB}, 2
    s_add_u32 s{S_T0}, s{S_T0}, s{S_T1}
    s_mul_i32 s{S_T0}, s{S_T0}, 112
    s_lshl_b32 s{S_T1}, s{S_CB}, 3
    s_add_u32 s{S_T0}, s{S_T0}, s{S_T1}
    s_and_b32 s{S_T1}, s{S_WAVE}, 1
    s_lshl_b32 s{S_T1}, s{S_T1}, 2
    s_add_u32 s{S_T0}, s{S_T0}, s{S_T1}
    s_lshl_b32 s{S_T0}, s{S_T0}, 10
    v_lshlrev_b32 v2, 4, v1
    s_mov_b32 s{S_T2}, 0x3fb8aa3b
    v_mov_b32 v3, 0x41e6d4ca
    s_nop 7
    """)
    E = FR
    for ft in range(2):
        for gg in range(2):
            for e in range(8):
                h = ACC + 16*ft + 8*gg + e
                t = E + 4*e
                a(f"""
                v_mul_f32 v{t}, s{S_T2}, v{h}
                v_min_f32 v{t}, v{t}, v3
                v_exp_f32 v{t}, v{t}
                """)
            for e in range(8):
                h = ACC + 16*ft + 8*gg + e
                t = E + 4*e
                a(f"""
                v_add_f32 v{t+1}, 2.0, v{t}
                v_mul_f32 v{t+2}, v{t}, v{t+1}
                v_fma_f32 v{t+1}, v{t}, v{t+1}, 2.0
                v_rcp_f32 v{t+1}, v{t+1}
                v_mul_f32 v{t+2}, v{h}, v{t+2}
                """)
            for e in range(8):
                t = E + 4*e
                a(f"v_mul_f32 v{t+2}, v{t+2}, v{t+1}")
            O = E + 32 + 4*(2*ft+gg)
            for e2 in range(4):
                a(f"v_cvt_pk_bf16_f32 v{O+e2}, v{E+8*e2+2}, v{E+8*e2+6}")
            a(f"buffer_store_dwordx4 {vr(O,4)}, v2, s[{SRD_WS}:{SRD_WS+3}], s{S_T0} offen offset:{1024*(2*ft+gg)} {SC}")
            vm.issue("act")
    return LDS_T + 8192


def phase2(a, SC="", LB=0):
    vm = VM(a)
    UP = 4160
    KB = LB
    XB = KB + 2 * 4608
    UB = XB + 8 * 2048
    LDS_END = UB + 16 * UP
    a("s_waitcnt lgkmcnt(0)")
    srd(a, SRD_WS, "ws"); srd(a, SRD_SK, "sk")
    a(f"""
    s_lshl_b32 s{S_T0}, s2, 2
    s_load_dword s{S_T4}, s[{PTR['sd']}:{PTR['sd']+1}], s{S_T0}
    """)
    a(f"""
    v_lshlrev_b32 v2, 4, v1
    s_lshr_b32 s{S_T1}, s{S_WAVE}, 2
    s_and_b32 s{S_T2}, s{S_WAVE}, 3
    s_mul_i32 s{S_T3}, s{S_T1}, 4608
    s_lshl_b32 s{S_T2}, s{S_T2}, 10
    s_add_u32 s{S_T3}, s{S_T3}, s{S_T2}
    s_add_u32 m0, s{S_T3}, {KB + 480}
    s_lshl_b32 s{S_T0}, s2, 13
    s_lshl_b32 s{S_T3}, s{S_WAVE}, 10
    s_add_u32 s{S_T0}, s{S_T0}, s{S_T3}
    buffer_load_dwordx4 v2, s[{SRD_SK}:{SRD_SK+3}], s{S_T0} offen lds
    """)
    vm.issue("K")
    W = 32
    a(f"""
    v_lshlrev_b32 v3, 4, v0
    v_add_u32 v4, 16, v3
    v_and_b32 v5, 255, v0
    v_cmp_ne_u32 vcc, 255, v5
    v_mov_b32 v10, {OOB}
    s_lshl_b32 s{S_T0}, s2, 13
    s_add_u32 s{S_T0}, s{S_T0}, {WS_KVT}
    v_cndmask_b32 v4, v10, v4, vcc
    buffer_load_dwordx4 {vr(W,4)}, v3, s[{SRD_WS}:{SRD_WS+3}], s{S_T0} offen {SC}
    buffer_load_dwordx4 {vr(W+4,4)}, v4, s[{SRD_WS}:{SRD_WS+3}], s{S_T0} offen {SC}
    """)
    vm.issue("U"); vm.issue("U")
    a(f"""
    v_mov_b32 v12, 0
    v_mov_b32 v13, 0
    v_mov_b32 v14, 0
    v_mov_b32 v15, 0
    v_min_u32 v6, 29, v1
    v_lshlrev_b32 v6, 4, v6
    ds_write_b128 v6, v[12:15] offset:{KB}
    ds_write_b128 v6, v[12:15] offset:{KB + 4608}
    v_and_b32 v6, 15, v1
    v_mul_u32_u24 v6, {UP}, v6
    ds_write_b128 v6, v[12:15] offset:{UB + 4096}
    """)
    a(f"""
    v_lshrrev_b32 v6, 8, v0
    v_mul_u32_u24 v6, {8*UP}, v6
    v_lshl_add_u32 v6, v5, 4, v6
    """)
    VA, VBk = 8, 9
    a(f"""
    s_lshr_b32 s{S_T1}, s{S_WAVE}, 2
    s_bfe_u32 s{S_T2}, s{S_WAVE}, 0x10001
    s_sub_u32 s{S_T2}, 1, s{S_T2}
    s_lshl_b32 s{S_T2}, s{S_T2}, 8
    s_mul_i32 s{S_T3}, s{S_T1}, {8*UP}
    s_add_u32 s{S_T3}, s{S_T3}, s{S_T2}
    s_add_u32 s{S_T3}, s{S_T3}, {UB + 16}
    v_and_b32 v2, 7, v1
    v_mul_u32_u24 v2, {UP}, v2
    v_bfe_u32 v3, v1, 3, 1
    v_lshrrev_b32 v4, 4, v1
    v_sub_u32 v3, v4, v3
    v_lshlrev_b32 v3, 4, v3
    v_add3_u32 v{VA}, v2, v3, s{S_T3}
    s_mul_i32 s{S_T3}, s{S_T1}, 4608
    s_add_u32 s{S_T3}, s{S_T3}, s{S_T2}
    s_add_u32 s{S_T3}, s{S_T3}, {KB}
    v_and_b32 v2, 15, v1
    v_lshlrev_b32 v2, 5, v2
    v_lshl_add_u32 v2, v4, 4, v2
    v_add_u32 v{VBk}, s{S_T3}, v2
    """)
    vm.wait("U")
    Bq, Cq, Dq = 40, 48, 56
    for i in range(6):
        a(f"v_mov_b32 v{Bq+i}, v{W+1+i}")
    for i in range(6):
        a(f"v_alignbyte_b32 v{Cq+i}, v{W+i+1}, v{W+i}, 2")
    for i in range(6):
        a(f"v_alignbyte_b32 v{Dq+i}, v{W+i+2}, v{W+i+1}, 2")
    for p in range(8):
        e = 7 - p
        aa = e >> 1
        if e & 1:
            src = (Cq + aa) if aa % 2 == 0 else (Dq + aa - 1)
        else:
            src = (W + aa) if aa % 2 == 0 else (Bq + aa - 1)
        a(f"ds_write_b128 v6, {vr(src,4)} offset:{UB + p*UP}")
    ACC = 16
    for i in range(16):
        a(f"v_mov_b32 v{ACC+i}, 0")
    vm.wait("K")
    a("""
    s_waitcnt lgkmcnt(0)
    s_barrier
    """)
    FA = [64, 128]
    FB = [96, 160]
    lab_rs1 = a.newlabel("L_cv_rs1")
    lab_join = a.newlabel("L_cv_join")
    a(f"""
    s_and_b32 s{S_T0}, s{S_WAVE}, 1
    s_cmp_eq_u32 s{S_T0}, 1
    s_cbranch_scc1 {lab_rs1}
    """)
    RSETS = [[0, 1, 6, 7], [2, 3, 4, 5]]
    for rs in range(2):
        if rs == 1:
            a.label(lab_rs1)
        rset = RSETS[rs]
        rmax = max(rset)
        def reads(rp):
            bf = rp & 1
            for b in range(rmax + 1):
                a(f"ds_read_b128 {vr(FA[bf]+4*b,4)}, v{VA} offset:{64*(59-8*b-rp)}")
                a(f"ds_read_b128 {vr(FB[bf]+4*b,4)}, v{VBk} offset:{64*(8*b+3-rp)}")
        reads(0)
        for rp in range(4):
            a("s_waitcnt lgkmcnt(0)")
            if rp < 3:
                reads(rp + 1)
            bf = rp & 1
            for ri, r in enumerate(rset):
                for b in range(r + 1):
                    a(f"v_mfma_f32_16x16x32_bf16 {vr(ACC+4*ri,4)}, {vr(FA[bf]+4*b,4)}, {vr(FB[bf]+4*(r-b),4)}, {vr(ACC+4*ri,4)}")
        a(f"""
        s_bfe_u32 s{S_T2}, s{S_WAVE}, 0x10001
        s_cmp_eq_u32 s{S_T2}, 0
        s_cselect_b32 s{S_T0}, {rset[0]}, {rset[2]}
        s_cselect_b32 s{S_T1}, {rset[1]}, {rset[3]}
        """)
        if rs == 0:
            a(f"s_branch {lab_join}")
    a.label(lab_join)
    lab_cs1 = a.newlabel("L_cv_cs1")
    lab_j2 = a.newlabel("L_cv_j2")
    a(f"""
    s_lshl_b32 s{S_T3}, s{S_WAVE}, 11
    v_lshlrev_b32 v2, 4, v1
    v_add_u32 v3, s{S_T3}, v2
    s_xor_b32 s{S_T3}, s{S_T3}, 0x1000
    v_add_u32 v4, s{S_T3}, v2
    s_nop 4
    s_cbranch_scc0 {lab_cs1}
    """)
    a.lines.pop()
    a(f"""
    s_cmp_eq_u32 s{S_T2}, 0
    s_cbranch_scc0 {lab_cs1}
    ds_write_b128 v3, {vr(ACC+8,4)} offset:{XB}
    ds_write_b128 v3, {vr(ACC+12,4)} offset:{XB+1024}
    s_branch {lab_j2}
    """)
    a.label(lab_cs1)
    a(f"""
    ds_write_b128 v3, {vr(ACC,4)} offset:{XB}
    ds_write_b128 v3, {vr(ACC+4,4)} offset:{XB+1024}
    s_nop 1
    """)
    for i in range(8):
        a(f"v_mov_b32 v{ACC+i}, v{ACC+8+i}")
    a.label(lab_j2)
    a(f"""
    s_lshr_b32 s{S_T3}, s{S_WAVE}, 2
    s_mul_i32 s{S_T2}, s{S_T3}, {8*UP}
    s_add_u32 s{S_T2}, s{S_T2}, {UB + 7*UP + 4088}
    v_and_b32 v5, 15, v1
    v_lshrrev_b32 v6, 4, v1
    v_lshlrev_b32 v7, 5, v5
    v_lshl_add_u32 v7, v6, 3, v7
    v_sub_u32 v7, s{S_T2}, v7
    s_lshl_b32 s{S_T2}, s{S_T0}, 9
    v_subrev_u32 v11, s{S_T2}, v7
    s_lshl_b32 s{S_T2}, s{S_T1}, 9
    v_subrev_u32 v12, s{S_T2}, v7
    ds_read_b64 v[40:41], v11
    ds_read_b64 v[42:43], v12
    s_waitcnt lgkmcnt(0)
    s_barrier
    ds_read_b128 v[32:35], v4 offset:{XB}
    ds_read_b128 v[36:39], v4 offset:{XB+1024}
    """)
    a(f"""
    s_lshl_b32 s{S_T2}, s{S_T4}, 16
    s_and_b32 s{S_T4}, s{S_T4}, 0xffff0000
    s_cmp_eq_u32 s{S_T3}, 0
    s_cselect_b32 s{S_T4}, s{S_T2}, s{S_T4}
    """)
    a(f"""
    v_mov_b32 v13, s{S_T0}
    v_mov_b32 v14, s{S_T1}
    v_and_b32 v15, 1, v6
    v_cmp_eq_u32 vcc, 0, v15
    v_lshrrev_b32 v15, 1, v6
    v_lshlrev_b32 v7, 5, v5
    v_cndmask_b32 v13, v14, v13, vcc
    v_lshl_add_u32 v7, v15, 4, v7
    v_lshl_add_u32 v7, v13, 9, v7
    s_lshl_b32 s{S_T2}, s2, 1
    s_add_u32 s{S_T2}, s{S_T2}, s{S_T3}
    s_lshl_b32 s{S_T2}, s{S_T2}, 12
    s_add_u32 s{S_T2}, s{S_T2}, {WS_Y2T}
    s_waitcnt lgkmcnt(0)
    """)
    R = 44
    for ri in range(2):
        kvr = 40 + 2*ri
        a(f"""
        v_and_b32 v48, 0xffff0000, v{kvr+1}
        v_lshlrev_b32 v49, 16, v{kvr+1}
        v_and_b32 v50, 0xffff0000, v{kvr}
        v_lshlrev_b32 v51, 16, v{kvr}
        """)
        for j in range(4):
            a(f"v_add_f32 v{ACC+4*ri+j}, v{ACC+4*ri+j}, v{32+4*ri+j}")
            a(f"v_fmac_f32 v{ACC+4*ri+j}, s{S_T4}, v{48+j}")
        a(f"v_cvt_pk_bf16_f32 v{R+2*ri}, v{ACC+4*ri}, v{ACC+4*ri+1}")
        a(f"v_cvt_pk_bf16_f32 v{R+2*ri+1}, v{ACC+4*ri+2}, v{ACC+4*ri+3}")
    a(f"""
    s_nop 1
    v_permlane16_swap_b32 v{R}, v{R+2}
    v_permlane16_swap_b32 v{R+1}, v{R+3}
    s_nop 1
    buffer_store_dwordx4 {vr(R,4)}, v7, s[{SRD_WS}:{SRD_WS+3}], s{S_T2} offen {SC}
    """)
    return LDS_END


def phase3(a, SC=""):
    vm = VM(a)
    PW = 17408
    PR = 272
    YB = 8 * PW
    LDS_END = YB + 8192
    a(f"""
    s_and_b32 s{S_T0}, s2, 7
    s_lshr_b32 s{S_T1}, s2, 3
    """)
    div7(a, S_T2, S_CB, S_T1)
    a(f"""
    s_lshl_b32 s{S_RB}, s{S_T0}, 2
    s_add_u32 s{S_RB}, s{S_RB}, s{S_T2}
    s_waitcnt lgkmcnt(0)
    """)
    srd(a, SRD_Q, "q"); srd(a, SRD_WS, "ws"); srd(a, SRD_W2, "w2"); srd(a, SRD_OUT, "out")
    W2R = 128
    ACC = 64
    AF = 8
    VQ = 240
    VG = 244
    VY = 246
    VWO, VAO, VT0, VT1 = 250, 251, 252, 253
    a(f"""
    v_lshrrev_b32 v2, 3, v1
    s_movk_i32 s{S_T2}, 896
    v_mul_lo_u32 v2, v2, s{S_T2}
    v_and_b32 v3, 7, v1
    v_bfe_u32 v4, v1, 4, 1
    v_lshlrev_b32 v4, 2, v4
    v_xor_b32 v3, v3, v4
    v_lshl_add_u32 v{VWO}, v3, 4, v2
    s_mul_i32 s{S_SOW}, s{S_WAVE}, {224*896}
    s_lshl_b32 s{S_T0}, s{S_CB}, 7
    s_add_u32 s{S_SOW}, s{S_SOW}, s{S_T0}
    s_mul_i32 s{S_M0}, s{S_WAVE}, {PW}
    v_lshlrev_b32 v{VAO}, 4, v1
    s_mul_i32 s{S_SOX}, s{S_RB}, {2*112}
    s_mul_i32 s{S_T0}, s{S_WAVE}, 14
    s_add_u32 s{S_SOX}, s{S_SOX}, s{S_T0}
    s_lshl_b32 s{S_SOX}, s{S_SOX}, 10
    """)
    def w2round(rd):
        for n in range(14):
            a(f"""
            s_add_u32 m0, s{S_M0}, {n*1024}
            s_add_u32 s{S_T0}, s{S_SOW}, {(14*rd+n)*8*896}
            buffer_load_dwordx4 v{VWO}, s[{SRD_W2}:{SRD_W2+3}], s{S_T0} offen lds
            """)
            vm.issue(f"w{rd}")
    def actload(st, kb):
        off = kb * 1024
        if off >= 4096:
            a(f"s_add_u32 s{S_T0}, s{S_SOX}, {st*112*1024 + (off & ~4095)}")
        else:
            a(f"s_add_u32 s{S_T0}, s{S_SOX}, {st*112*1024}")
        a(f"buffer_load_dwordx4 {vr(AF+4*kb,4)}, v{VAO}, s[{SRD_WS}:{SRD_WS+3}], s{S_T0} offen offset:{off & 4095} {SC}")
        vm.issue(f"a{st}_{kb}")
    w2round(0)
    for kb in range(14):
        actload(0, kb)
    a(f"""
    v_lshrrev_b32 v2, 3, v1
    v_lshlrev_b32 v2, 12, v2
    v_and_b32 v3, 7, v1
    v_lshl_add_u32 v2, v3, 4, v2
    s_lshl_b32 s{S_T0}, s{S_CB}, 6
    s_lshl_b32 s{S_T1}, s{S_WAVE}, 3
    s_add_u32 s{S_T0}, s{S_T0}, s{S_T1}
    s_lshl_b32 s{S_T0}, s{S_T0}, 12
    s_lshl_b32 s{S_T1}, s{S_RB}, 7
    s_add_u32 s{S_T0}, s{S_T0}, s{S_T1}
    s_add_u32 s{S_T0}, s{S_T0}, {WS_Y2T}
    s_lshl_b32 s{S_T1}, s{S_WAVE}, 10
    s_add_u32 m0, s{S_T1}, {YB}
    s_nop 0
    buffer_load_dwordx4 v2, s[{SRD_WS}:{SRD_WS+3}], s{S_T0} offen lds {SC}
    """)
    vm.issue("y")
    VS, VO, VOUT = 254, 255, 245
    a(f"""
    s_lshr_b32 s{S_T0}, s{S_WAVE}, 1
    s_lshl_b32 s{S_T0}, s{S_T0}, 4
    v_and_b32 v2, 15, v1
    v_add_u32 v{VS}, s{S_T0}, v2
    s_and_b32 s{S_T0}, s{S_WAVE}, 1
    s_lshl_b32 s{S_T0}, s{S_T0}, 2
    v_lshrrev_b32 v2, 4, v1
    v_add_u32 v{VO}, s{S_T0}, v2
    s_lshl_b32 s{S_T0}, s{S_RB}, 6
    v_add_u32 v2, s{S_T0}, v{VS}
    s_movk_i32 s{S_T2}, 896
    v_mul_lo_u32 v3, v2, s{S_T2}
    v_lshl_add_u32 v3, v{VO}, 4, v3
    s_lshl_b32 s{S_T0}, s{S_CB}, 7
    v_add_u32 v{VOUT}, s{S_T0}, v3
    v_lshlrev_b32 v2, 2, v2
    s_mov_b32 s{S_T0}, {WS_G}
    buffer_load_dwordx4 {vr(VQ,4)}, v{VOUT}, s[{SRD_Q}:{SRD_Q+3}], 0 offen
    buffer_load_dword v{VG}, v2, s[{SRD_WS}:{SRD_WS+3}], s{S_T0} offen {SC}
    """)
    vm.issue("q"); vm.issue("q")
    a(f"""
    v_bfe_u32 v2, v1, 4, 1
    v_lshrrev_b32 v3, 5, v1
    v_bfe_u32 v4, v1, 2, 2
    v_and_b32 v5, 3, v1
    v_lshl_add_u32 v6, v3, 2, v4
    v_lshlrev_b32 v6, 7, v6
    v_lshrrev_b32 v7, 1, v5
    v_lshl_add_u32 v7, v2, 1, v7
    v_lshrrev_b32 v4, 1, v4
    v_lshlrev_b32 v4, 2, v4
    v_xor_b32 v7, v7, v4
    v_lshl_add_u32 v6, v7, 4, v6
    v_and_b32 v5, 1, v5
    v_lshl_add_u32 v6, v5, 3, v6
    v_add_u32 v{VT0}, s{S_M0}, v6
    v_xor_b32 v6, 64, v6
    v_add_u32 v{VT1}, s{S_M0}, v6
    """)
    for i in range(64):
        a(f"v_mov_b32 v{ACC+i}, 0")
    def trreads(rd):
        for kb in range(7):
            for dt in range(2):
                for p in range(2):
                    a(f"ds_read_b64_tr_b16 {vr(W2R + 8*(7*rd+kb) + 4*dt + 2*p, 2)}, v{VT0+dt} offset:{2048*kb + 1024*p}")
    vm.wait("w0")
    trreads(0)
    a("s_waitcnt lgkmcnt(0)")
    w2round(1)
    vm.wait("w1")
    trreads(1)
    a("s_waitcnt lgkmcnt(0)")
    for st in range(2):
        for kb in range(14):
            vm.wait(f"a{st}_{kb}")
            for dt in range(2):
                ac = ACC + 32*st + 16*dt
                a(f"v_mfma_f32_32x32x16_bf16 {vr(ac,16)}, {vr(W2R+8*kb+4*dt,4)}, {vr(AF+4*kb,4)}, {vr(ac,16)}")
            if st == 0:
                actload(1, kb)
    a(f"""
    v_and_b32 v2, 31, v1
    v_mul_u32_u24 v2, {PR}, v2
    v_lshrrev_b32 v3, 5, v1
    v_lshl_add_u32 v2, v3, 4, v2
    v_add_u32 v2, s{S_M0}, v2
    s_nop 7
    """)
    for st in range(2):
        for dt in range(2):
            for g in range(4):
                a(f"ds_write_b128 v2, {vr(ACC+32*st+16*dt+4*g,4)} offset:{32*st*PR + 128*dt + 32*g}")
    vm.wait("y")
    a("""
    s_waitcnt lgkmcnt(0)
    s_barrier
    """)
    a(f"""
    v_mul_u32_u24 v2, {PR}, v{VS}
    v_lshl_add_u32 v2, v{VO}, 5, v2
    v_add_u32 v3, {4*PW}, v2
    """)
    for w in range(8):
        base = 2 if w < 4 else 3
        a(f"ds_read_b128 {vr(ACC+8*w,4)}, v{base} offset:{(w&3)*PW}")
        a(f"ds_read_b128 {vr(ACC+8*w+4,4)}, v{base} offset:{(w&3)*PW+16}")
    a(f"""
    v_bfe_u32 v4, v1, 2, 2
    v_lshl_add_u32 v4, v{VO}, 3, v4
    v_lshlrev_b32 v4, 7, v4
    v_and_b32 v5, 3, v1
    v_lshl_add_u32 v4, v5, 3, v4
    s_lshr_b32 s{S_T0}, s{S_WAVE}, 1
    s_lshl_b32 s{S_T0}, s{S_T0}, 5
    s_add_u32 s{S_T0}, s{S_T0}, {YB}
    v_add_u32 v4, s{S_T0}, v4
    ds_read_b64_tr_b16 {vr(VY,2)}, v4
    ds_read_b64_tr_b16 {vr(VY+2,2)}, v4 offset:512
    """)
    vm.wait("q")
    a(f"""
    v_sub_f32 v5, 1.0, v{VG}
    v_cvt_pk_bf16_f32 v5, v5, v5
    v_lshlrev_b32 v5, 16, v5
    s_waitcnt lgkmcnt(0)
    """)
    for w in range(1, 8):
        for e in range(0, 8, 2):
            a(f"v_pk_add_f32 {vr(ACC+e,2)}, {vr(ACC+e,2)}, {vr(ACC+8*w+e,2)}")
    T = 8
    for d in range(4):
        a(f"""
        v_lshlrev_b32 v{T}, 16, v{VQ+d}
        v_and_b32 v{T+1}, 0xffff0000, v{VQ+d}
        v_lshlrev_b32 v{T+2}, 16, v{VY+d}
        v_and_b32 v{T+3}, 0xffff0000, v{VY+d}
        v_mul_f32 v{T}, v{T}, v{T+2}
        v_mul_f32 v{T+1}, v{T+1}, v{T+3}
        v_mul_f32 v{T}, v{T}, v{VG}
        v_mul_f32 v{T+1}, v{T+1}, v{VG}
        v_fmac_f32 v{T}, v5, v{ACC+2*d}
        v_fmac_f32 v{T+1}, v5, v{ACC+2*d+1}
        v_cvt_pk_bf16_f32 v{T+4+d}, v{T}, v{T+1}
        """)
    a(f"buffer_store_dwordx4 {vr(T+4,4)}, v{VOUT}, s[{SRD_OUT}:{SRD_OUT+3}], 0 offen")
    return LDS_END


def main():
    a = Asm()
    hdr = []
    body = Asm()
    kds = []
    k1 = Asm()
    prologue(k1, "k1_kernel", "L_k1_end")
    lds1 = phase1(k1)
    k1.label("L_k1_end")
    k1("s_endpgm")
    hdr.append(f"; @launch kernel=k1_kernel grid=({NWG},1,1) block=(512,1,1) lds={lds1}")
    kds.append(kd("k1_kernel", 256))
    k2 = Asm()
    prologue(k2, "k2_kernel", "L_k2_end")
    lds2 = phase2(k2)
    k2.label("L_k2_end")
    k2("s_endpgm")
    hdr.append(f"; @launch kernel=k2_kernel grid=({NWG},1,1) block=(512,1,1) lds={lds2}")
    kds.append(kd("k2_kernel", 256))
    k3 = Asm()
    prologue(k3, "k3_kernel", "L_k3_end")
    lds3 = phase3(k3)
    k3.label("L_k3_end")
    k3("s_endpgm")
    hdr.append(f"; @launch kernel=k3_kernel grid=({NWG},1,1) block=(512,1,1) lds={lds3}")
    kds.append(kd("k3_kernel", 256))
    out = "\n".join(hdr) + "\n" + '.amdgcn_target "amdgcn-amd-amdhsa--gfx950"\n.text\n' + k1.text() + k2.text() + k3.text()
    out += '.section .rodata,"a"\n' + "".join(kds)
    open(sys.argv[1], "w").write(out)

if __name__ == "__main__":
    main()
```

```python
import sys
sys.path.insert(0, "dev")
from genlib import Asm, vr, sr, kd

NAME = "gated_mix__ssm_conv_h3__dense_activation_mish__prompt_kernel"
NWG = 224
WS_ACT = 0
WS_KVT = 8 << 20
WS_Y2T = 10 << 20
WS_G = 12 << 20
WS_W2P = 13 << 20
WS_FLAG = 15 << 20
FP = WS_FLAG
FA = WS_FLAG + (64 << 10)
FY = WS_FLAG + (320 << 10)
WS_STAMP = 16 << 20
WS_SIZE = 32 << 20

S_WAVE = 3
S_T0, S_T1, S_T2, S_T3, S_T4, S_T5 = 4, 5, 6, 7, 8, 9
S_RB, S_CB, S_RBK, S_CG, S_RT2, S_CT2 = 10, 11, 12, 13, 14, 15
PTR = dict(q=16, k=18, v=20, sh=22, sk=24, sd=26, bx=28, w1=30, b1=32, w2=34, gw=36, out=38, dbg=40, ws=42)
SRD_Q, SRD_K, SRD_V, SRD_SH, SRD_W1, SRD_B1, SRD_GW, SRD_WS = 44, 48, 52, 56, 60, 64, 68, 72
SRD_SK, SRD_W2, SRD_OUT, SRD_DBG, SRD_QG = 76, 80, 84, 88, 92
S_NON = 96
S_TM = 98
S_D = 100
S_M0 = 101
S_SOX, S_SOW, S_KC, S_ROT2, S_R0, S_R1 = 16, 17, 18, 19, 20, 21
S_AB, S_WB, S_LOG = 22, 23, 24
S_SPIN = 25
SIZE = dict(q=2048*448*2, k=2048*448*2, v=2048*448*2, sh=448*4*2, sk=448*2048*2, sd=448*2, w1=448*1792*2,
            b1=1792*2, w2=1792*448*2, gw=448*2, out=2048*448*2, ws=WS_SIZE, dbg=256)
OOB = 0x7fff0000

STG = [32768, 65536, 0, 99328]
UB = 32768
UP = 4160
KB = 132096
LT = 141312
LW2 = 149504
LSM = 157696
LDS_END = LSM + 3072
KT = KB
XB = 0
PART = 0
ATERM = 131072
YB = 147456

P = dict(prep_after=2, kv_bar=6, pst_bar=18, poll_at=24, w2_every=6, mper=4, flag_at=52, sleep=2, touch=0, fsh=7)


class Cnt:
    def __init__(self, a, name, cap):
        self.a, self.name, self.cap = a, name, cap
        self.ops = []
    def issue(self, tag, n=1):
        for _ in range(n):
            self.ops.append(tag)
    def wait(self, tag):
        if tag not in self.ops:
            return
        idx = max(i for i, t in enumerate(self.ops) if t == tag)
        n = len(self.ops) - 1 - idx
        if n > self.cap:
            n = self.cap
            idx = len(self.ops) - 1 - n
        self.a(f"s_waitcnt {self.name}({n})")
        self.ops = self.ops[idx + 1:]
    def wait_all(self):
        self.a(f"s_waitcnt {self.name}(0)")
        self.ops = []
    def clear(self):
        self.ops = []


class G:
    pass


def gen(stamps=False):
    a = Asm()
    vm = Cnt(a, "vmcnt", 62)
    lg = Cnt(a, "lgkmcnt", 15)
    nst = [0]
    VST = 23

    def stamp():
        if not stamps:
            return
        a(f"""
        s_memtime s[{S_TM}:{S_TM+1}]
        s_waitcnt lgkmcnt(0)
        v_writelane_b32 v{VST}, s{S_TM}, {nst[0]}
        """)
        lg.clear()
        nst[0] += 1

    def srd(dst, name):
        p = PTR[name]
        a(f"""
        s_mov_b32 s{dst}, s{p}
        s_and_b32 s{dst+1}, s{p+1}, 0xffff
        s_mov_b32 s{dst+2}, {SIZE[name]}
        s_mov_b32 s{dst+3}, 0x00020000
        """)

    def S(x):
        return f"s[{x}:{x+3}]"

    def poll_check(vflag, vaddr, soff_reg):
        l_ok = a.newlabel("L_pok")
        l_re = a.newlabel("L_pre")
        a(f"""
        v_cmp_ne_u64 vcc, s[{S_NON}:{S_NON+1}], v[{vflag}:{vflag+1}]
        s_cbranch_vccz {l_ok}
        """)
        a.label(l_re)
        a(f"""
        s_cmp_eq_u32 s{S_SPIN}, 0
        s_cbranch_scc1 {l_ok}
        s_sub_u32 s{S_SPIN}, s{S_SPIN}, 1
        s_sleep {P["sleep"]}
        buffer_load_dwordx2 v[{vflag}:{vflag+1}], v{vaddr}, {S(SRD_WS)}, s{soff_reg} offen sc1
        s_waitcnt vmcnt(0)
        v_cmp_ne_u64 vcc, s[{S_NON}:{S_NON+1}], v[{vflag}:{vflag+1}]
        s_cbranch_vccnz {l_re}
        """)
        a.label(l_ok)

    a.raw(f".globl {NAME}\n.p2align 8\n.type {NAME},@function")
    a.label(NAME)
    a(f"""
    s_cmp_ge_u32 s2, {NWG}
    s_cbranch_scc1 L_end
    s_load_dwordx16 s[16:31], s[0:1], 0
    s_load_dwordx8 s[32:39], s[0:1], 64
    s_load_dwordx4 s[40:43], s[0:1], 96
    v_lshrrev_b32 v2, 6, v0
    v_and_b32 v1, 63, v0
    s_and_b32 s{S_T0}, s2, 7
    v_readfirstlane_b32 s{S_WAVE}, v2
    s_lshr_b32 s{S_T1}, s2, 3
    s_mul_i32 s{S_T2}, s{S_T1}, 9363
    s_lshr_b32 s{S_T2}, s{S_T2}, 16
    s_mul_i32 s{S_T3}, s{S_T2}, 7
    s_sub_u32 s{S_T3}, s{S_T1}, s{S_T3}
    """)
    a(f"""
    s_lshr_b32 s{S_RB}, s{S_T0}, 1
    s_lshl_b32 s{S_RB}, s{S_RB}, 2
    s_add_u32 s{S_RB}, s{S_RB}, s{S_T2}
    s_and_b32 s{S_CB}, s{S_T0}, 1
    s_mul_i32 s{S_CB}, s{S_CB}, 7
    s_add_u32 s{S_CB}, s{S_CB}, s{S_T3}
    s_lshr_b32 s{S_CG}, s2, 5
    s_and_b32 s{S_RBK}, s2, 31
    s_lshl_b32 s{S_RT2}, s{S_T0}, 2
    s_add_u32 s{S_RT2}, s{S_RT2}, s{S_T2}
    s_mov_b32 s{S_CT2}, s{S_T3}
    s_lshl_b32 s{S_T4}, s{S_T2}, 1
    s_add_u32 s{S_T4}, s{S_T4}, s{S_T3}
    s_cmp_ge_u32 s{S_T4}, 7
    s_cselect_b32 s{S_T5}, 7, 0
    s_sub_u32 s{S_T4}, s{S_T4}, s{S_T5}
    """)
    VXE, VXO, VWO = 12, 13, 14
    a(f"""
    v_lshrrev_b32 v2, 3, v1
    s_lshl_b32 s{S_T0}, s{S_WAVE}, 4
    v_add_u32 v2, s{S_T0}, v2
    s_movk_i32 s{S_T2}, 896
    v_mul_lo_u32 v2, v2, s{S_T2}
    v_and_b32 v3, 7, v1
    v_lshrrev_b32 v4, 4, v1
    v_xor_b32 v3, v3, v4
    v_lshl_add_u32 v{VXE}, v3, 4, v2
    v_xor_b32 v3, 4, v3
    v_lshl_add_u32 v{VXO}, v3, 4, v2
    v_add_u32 v{VXO}, {8*896}, v{VXO}
    s_lshl_b32 s{S_T0}, s{S_WAVE}, 3
    v_add_u32 v2, s{S_T0}, v4
    s_movk_i32 s{S_T2}, 3584
    v_mul_lo_u32 v2, v2, s{S_T2}
    v_and_b32 v3, 15, v1
    v_lshlrev_b32 v5, 2, v4
    v_xor_b32 v3, v3, v5
    v_lshl_add_u32 v{VWO}, v3, 4, v2
    s_lshl_b32 s{S_M0}, s{S_WAVE}, 11
    s_waitcnt lgkmcnt(0)
    """)
    srd(SRD_Q, "q"); srd(SRD_W1, "w1")
    a(f"""
    s_lshl_b32 s{S_T0}, s2, 2
    s_load_dword s{S_D}, s[{PTR['sd']}:{PTR['sd']+1}], s{S_T0}
    """)
    srd(SRD_K, "k"); srd(SRD_V, "v"); srd(SRD_SH, "sh"); srd(SRD_B1, "b1"); srd(SRD_GW, "gw"); srd(SRD_WS, "ws")
    srd(SRD_SK, "sk"); srd(SRD_W2, "w2"); srd(SRD_OUT, "out"); srd(SRD_DBG, "dbg"); srd(SRD_QG, "q")
    a(f"""
    s_cmp_lt_u32 s2, 128
    s_cselect_b32 s{SRD_QG+2}, s{SRD_QG+2}, 0
    s_waitcnt lgkmcnt(0)
    s_mul_i32 s{S_SOX}, s{S_RB}, {128*896}
    s_lshl_b32 s{S_SOW}, s{S_CB}, 8
    s_mov_b32 s{S_KC}, s{S_T4}
    s_lshl_b32 s{S_ROT2}, s{S_T4}, 1
    s_mov_b32 s{S_SPIN}, 20000
    """)
    if stamps:
        a(f"""
        v_mov_b32 v{VST}, 0
        s_memrealtime s[{S_TM}:{S_TM+1}]
        s_waitcnt lgkmcnt(0)
        v_writelane_b32 v{VST}, s{S_TM}, 31
        """)
    stamp()

    def issue_chunk(t):
        st = STG[t % 4]
        tag = f"c{t}"
        a(f"""
        s_lshl_b32 s{S_T0}, s{S_KC}, 7
        s_add_u32 s{S_T0}, s{S_T0}, s{S_SOX}
        s_add_u32 m0, s{S_M0}, {st}
        s_mul_i32 s{S_T1}, s{S_KC}, {64*3584}
        buffer_load_dwordx4 v{VXE}, {S(SRD_Q)}, s{S_T0} offen lds
        s_add_u32 m0, s{S_M0}, {st+1024}
        s_add_u32 s{S_T1}, s{S_T1}, s{S_SOW}
        buffer_load_dwordx4 v{VXO}, {S(SRD_Q)}, s{S_T0} offen lds
        s_add_u32 m0, s{S_M0}, {st+16384}
        s_add_u32 s{S_T0}, s{S_T1}, {4*3584}
        buffer_load_dwordx4 v{VWO}, {S(SRD_W1)}, s{S_T1} offen lds
        s_add_u32 m0, s{S_M0}, {st+16384+1024}
        s_add_u32 s{S_KC}, s{S_KC}, 1
        buffer_load_dwordx4 v{VWO}, {S(SRD_W1)}, s{S_T0} offen lds
        s_cmp_eq_u32 s{S_KC}, 7
        s_cselect_b32 s{S_KC}, 0, s{S_KC}
        """)
        vm.issue(tag, 4)

    W2R = 144
    VK, VV, VW, VGX, VGW, VB, T = 144, 160, 164, 180, 188, 196, 212
    VW2F = 240
    ACC1 = 32
    FR = 64
    def nonce_pub():
        a(f"""
        s_or_b32 s{S_T0}, s2, s{S_WAVE}
        s_cmp_lg_u32 s{S_T0}, 0
        s_cbranch_scc1 L_nononce
        s_memrealtime s[{S_NON}:{S_NON+1}]
        s_waitcnt lgkmcnt(0)
        s_or_b32 s{S_NON}, s{S_NON}, 1
        v_mov_b32 v2, s{S_NON}
        v_mov_b32 v3, s{S_NON+1}
        v_lshlrev_b32 v4, 8, v1
        buffer_store_dwordx2 v[2:3], v4, {S(SRD_DBG)}, 0 offen sc1
        """)
        a.label("L_nononce")

    def small_loads():
        l_skip = a.newlabel("L_sm")
        a(f"""
        v_mov_b32 v10, {OOB}
        s_cmp_ge_u32 s{S_WAVE}, 4
        s_cbranch_scc1 {l_skip}
        v_lshlrev_b32 v2, 4, v1
        s_cmp_eq_u32 s{S_WAVE}, 1
        s_cselect_b32 s{S_T0}, {SRD_SH}, 0
        """)
        a.lines.pop(); a.lines.pop()
        l1 = a.newlabel("L_sm1"); l2 = a.newlabel("L_sm2"); l3 = a.newlabel("L_sm3")
        a(f"""
        s_cmp_eq_u32 s{S_WAVE}, 1
        s_cbranch_scc1 {l1}
        s_cmp_eq_u32 s{S_WAVE}, 2
        s_cbranch_scc1 {l2}
        s_cmp_eq_u32 s{S_WAVE}, 3
        s_cbranch_scc1 {l3}
        v_lshrrev_b32 v3, 3, v1
        s_lshl_b32 s{S_T0}, s{S_RBK}, 6
        s_sub_u32 s{S_T0}, s{S_T0}, 8
        v_add_u32 v3, s{S_T0}, v3
        s_movk_i32 s{S_T2}, 896
        v_mul_lo_u32 v4, v3, s{S_T2}
        v_and_b32 v5, 7, v1
        v_cmp_le_i32 vcc, 0, v3
        v_lshl_add_u32 v4, v5, 4, v4
        s_lshl_b32 s{S_T1}, s{S_CG}, 7
        s_mov_b32 m0, {KT}
        v_cndmask_b32 v4, v10, v4, vcc
        buffer_load_dwordx4 v4, {S(SRD_K)}, s{S_T1} offen lds
        s_branch {l_skip}
        """)
        a.label(l1)
        a(f"""
        s_lshl_b32 s{S_T1}, s{S_CG}, 9
        s_mov_b32 m0, {LSM}
        s_nop 0
        buffer_load_dwordx4 v2, {S(SRD_SH)}, s{S_T1} offen lds
        s_branch {l_skip}
        """)
        a.label(l2)
        a(f"""
        s_lshl_b32 s{S_T1}, s{S_CB}, 8
        s_mov_b32 m0, {LSM+1024}
        s_nop 0
        buffer_load_dwordx4 v2, {S(SRD_B1)}, s{S_T1} offen lds
        s_branch {l_skip}
        """)
        a.label(l3)
        a(f"""
        s_mov_b32 m0, {LSM+2048}
        s_nop 0
        buffer_load_dwordx4 v2, {S(SRD_GW)}, 0 offen lds
        """)
        a.label(l_skip)

    VGROW = 15
    def prep_loads():
        a(f"""
        v_and_b32 v2, 7, v0
        v_lshrrev_b32 v3, 3, v0
        s_lshl_b32 s{S_T0}, s{S_RBK}, 6
        v_add_u32 v4, s{S_T0}, v3
        s_lshl_b32 s{S_T1}, s{S_CG}, 7
        s_movk_i32 s{S_T2}, 896
        v_mul_lo_u32 v6, v4, s{S_T2}
        v_lshl_add_u32 v6, v2, 4, v6
        s_lshl_b32 s{S_T3}, s{S_WAVE}, 10
        s_add_u32 m0, s{S_T3}, {KT + 1024}
        s_nop 0
        buffer_load_dwordx4 v6, {S(SRD_K)}, s{S_T1} offen lds
        buffer_load_dwordx4 {vr(VV,4)}, v6, {S(SRD_V)}, s{S_T1} offen
        """)
        vm.issue("kv", 2)
        a(f"""
        v_lshrrev_b32 v2, 2, v1
        v_mul_lo_u32 v2, v2, s{S_T2}
        v_and_b32 v3, 3, v1
        v_lshl_add_u32 v2, v3, 4, v2
        s_mul_i32 s{S_T1}, s{S_RT2}, 7
        s_min_u32 s{S_T4}, s{S_WAVE}, 6
        s_add_u32 s{S_T1}, s{S_T1}, s{S_T4}
        s_lshr_b32 s{S_T0}, s{S_T1}, 1
        s_mul_i32 s{S_T0}, s{S_T0}, {16*896}
        s_and_b32 s{S_T1}, s{S_T1}, 1
        s_lshl_b32 s{S_T1}, s{S_T1}, 6
        s_add_u32 s{S_T0}, s{S_T0}, s{S_T1}
        s_lshl_b32 s{S_T1}, s{S_CT2}, 7
        s_add_u32 s{S_T0}, s{S_T0}, s{S_T1}
        s_add_u32 m0, s{S_T3}, {LW2}
        s_nop 0
        buffer_load_dwordx4 v2, {S(SRD_W2)}, s{S_T0} offen lds
        """)
        vm.issue("w2raw")
        a(f"""
        v_lshrrev_b32 v2, 5, v1
        s_lshl_b32 s{S_T0}, s{S_RBK}, 6
        s_lshl_b32 s{S_T1}, s{S_CG}, 4
        s_add_u32 s{S_T0}, s{S_T0}, s{S_T1}
        s_lshl_b32 s{S_T1}, s{S_WAVE}, 1
        s_add_u32 s{S_T0}, s{S_T0}, s{S_T1}
        v_add_u32 v{VGROW}, s{S_T0}, v2
        v_mul_lo_u32 v2, v{VGROW}, s{S_T2}
        v_and_b32 v3, 31, v1
        v_lshlrev_b32 v4, 4, v3
        v_cmp_gt_u32 vcc, 28, v3
        v_add_u32 v2, v2, v4
        s_nop 0
        v_cndmask_b32 v2, v10, v2, vcc
        buffer_load_dwordx4 {vr(VGX,4)}, v2, {S(SRD_QG)}, 0 offen
        buffer_load_dwordx4 {vr(VGX+4,4)}, v2, {S(SRD_QG)}, 0 offen offset:448
        """)
        vm.issue("g", 2)

    if P["touch"]:
        a(f"""
        v_lshlrev_b32 v2, 18, v1
        v_add_u32 v2, {(1<<18) - 128}, v2
        buffer_load_dword v3, v2, {S(SRD_WS)}, 0 offen sc1
        v_lshlrev_b32 v2, 15, v1
        buffer_load_dword v4, v2, {S(SRD_OUT)}, 0 offen sc1
        buffer_load_dword v5, v2, {S(SRD_SK)}, 0 offen
        """)
    small_loads()
    nonce_pub()
    for t in range(4):
        if t == P["prep_after"]:
            prep_loads()
        issue_chunk(t)
        stamp()
    if P["prep_after"] == 4:
        prep_loads()
    VBA = 16
    VBB = 24
    VAA = 20
    VAB = 28
    a(f"""
    s_lshr_b32 s{S_T0}, s{S_WAVE}, 1
    s_lshl_b32 s{S_T0}, s{S_T0}, 5
    v_and_b32 v2, 31, v1
    v_add_u32 v2, s{S_T0}, v2
    v_lshrrev_b32 v3, 5, v1
    v_bfe_u32 v4, v2, 1, 3
    v_xor_b32 v3, v3, v4
    v_lshlrev_b32 v3, 4, v3
    v_lshl_add_u32 v{VBA}, v2, 7, v3
    v_xor_b32 v{VBA+1}, 32, v{VBA}
    v_xor_b32 v{VBA+2}, 64, v{VBA}
    v_xor_b32 v{VBA+3}, 0x60, v{VBA}
    v_add_u32 v{VBB}, 0x10000, v{VBA}
    v_add_u32 v{VBB+1}, 0x10000, v{VBA+1}
    v_add_u32 v{VBB+2}, 0x10000, v{VBA+2}
    v_add_u32 v{VBB+3}, 0x10000, v{VBA+3}
    v_bfe_u32 v2, v1, 4, 1
    v_lshrrev_b32 v3, 5, v1
    v_bfe_u32 v4, v1, 2, 2
    v_and_b32 v5, 3, v1
    v_lshl_add_u32 v6, v3, 3, v4
    v_lshlrev_b32 v6, 8, v6
    s_and_b32 s{S_T0}, s{S_WAVE}, 1
    s_lshl_b32 s{S_T0}, s{S_T0}, 3
    v_lshl_add_u32 v7, v2, 1, s{S_T0}
    v_lshrrev_b32 v8, 1, v5
    v_add_u32 v7, v7, v8
    v_lshlrev_b32 v8, 2, v4
    v_xor_b32 v7, v7, v8
    v_lshl_add_u32 v6, v7, 4, v6
    v_and_b32 v5, 1, v5
    v_lshl_add_u32 v{VAA}, v5, 3, v6
    v_xor_b32 v{VAA+1}, 64, v{VAA}
    v_add_u32 v{VAB}, 0x10000, v{VAA}
    v_add_u32 v{VAB+1}, 0x10000, v{VAA+1}
    """)
    side = {n: [] for n in range(28)}

    def kv_reads():
        a(f"""
        v_lshlrev_b32 v2, 4, v0
        v_add_u32 v2, {KT + 1024 - 384}, v2
        v_and_b32 v3, 7, v0
        v_lshlrev_b32 v3, 6, v3
        v_add_u32 v3, {LSM}, v3
        s_mov_b32 s{S_R0}, 0x05040100
        s_mov_b32 s{S_R1}, 0x07060302
        """)
        for j in range(4):
            a(f"ds_read_b128 {vr(VK+4*j,4)}, v2 offset:{384-128*j}")
        for j in range(4):
            a(f"ds_read_b128 {vr(VW+4*j,4)}, v3 offset:{16*j}")
        lg.issue("kvr", 8)

    def kv_part(d):
        def f():
            if d == 0:
                lg.wait("kvr")
            c0, c1 = 2*d, 2*d+1
            a(f"""
            v_perm_b32 v{T}, v{VK+4+d}, v{VK+d}, s{S_R0}
            v_perm_b32 v{T+1}, v{VK+4+d}, v{VK+d}, s{S_R1}
            v_perm_b32 v{T+2}, v{VK+12+d}, v{VK+8+d}, s{S_R0}
            v_perm_b32 v{T+3}, v{VK+12+d}, v{VK+8+d}, s{S_R1}
            v_dot2_f32_bf16 v{T+4}, v{T}, v{VW+2*c0}, 0
            v_dot2_f32_bf16 v{T+5}, v{T+1}, v{VW+2*c1}, 0
            v_lshlrev_b32 v{T+6}, 16, v{VV+d}
            v_and_b32 v{T+7}, 0xffff0000, v{VV+d}
            v_dot2_f32_bf16 v{T+4}, v{T+2}, v{VW+2*c0+1}, v{T+4}
            v_dot2_f32_bf16 v{T+5}, v{T+3}, v{VW+2*c1+1}, v{T+5}
            s_nop 1
            v_mul_f32 v{T+4}, v{T+4}, v{T+6}
            v_mul_f32 v{T+5}, v{T+5}, v{T+7}
            v_cvt_pk_bf16_f32 v{T+20+d}, v{T+4}, v{T+5}
            """)
            if d == 3:
                a(f"""
                v_lshrrev_b32 v2, 3, v0
                v_sub_u32 v2, 63, v2
                v_and_b32 v3, 7, v0
                v_lshlrev_b32 v3, 4, v3
                v_lshl_add_u32 v2, v2, 7, v3
                v_add_u32 v2, {LT}, v2
                ds_write_b128 v2, {vr(T+20,4)}
                """)
                lg.issue("tw")
        return f

    def gw_reads():
        a(f"""
        v_and_b32 v2, 31, v1
        v_min_u32 v2, 27, v2
        v_lshlrev_b32 v2, 4, v2
        v_add_u32 v2, {LSM+2048}, v2
        ds_read_b128 {vr(VGW,4)}, v2
        ds_read_b128 {vr(VGW+4,4)}, v2 offset:448
        """)
        lg.issue("gwr", 2)

    def kbuf_zero():
        a(f"""
        v_mov_b32 v4, 0
        v_mov_b32 v5, 0
        v_mov_b32 v6, 0
        v_mov_b32 v7, 0
        v_min_u32 v2, 29, v1
        v_lshlrev_b32 v2, 4, v2
        v_add_u32 v2, {KB}, v2
        ds_write_b128 v2, v[4:7]
        ds_write_b128 v2, v[4:7] offset:4608
        """)
        lg.issue("z", 2)

    def w2p_read():
        vm.wait("w2raw")
        a(f"""
        v_lshrrev_b32 v2, 5, v1
        v_bfe_u32 v3, v1, 2, 2
        v_lshl_add_u32 v2, v2, 2, v3
        v_lshlrev_b32 v2, 6, v2
        v_bfe_u32 v3, v1, 4, 1
        v_lshl_add_u32 v2, v3, 5, v2
        v_and_b32 v3, 3, v1
        v_lshl_add_u32 v2, v3, 3, v2
        s_lshl_b32 s{S_T3}, s{S_WAVE}, 10
        s_add_u32 s{S_T3}, s{S_T3}, {LW2}
        v_add_u32 v2, s{S_T3}, v2
        ds_read_b64_tr_b16 {vr(VW2F,2)}, v2
        ds_read_b64_tr_b16 {vr(VW2F+2,2)}, v2 offset:512
        """)
        lg.issue("w2tr", 2)

    def w2p_store():
        a(f"""
        s_mul_i32 s{S_T0}, s{S_CT2}, 224
        s_mul_i32 s{S_T1}, s{S_RT2}, 7
        s_add_u32 s{S_T0}, s{S_T0}, s{S_T1}
        s_add_u32 s{S_T0}, s{S_T0}, s{S_WAVE}
        s_lshl_b32 s{S_T0}, s{S_T0}, 10
        s_add_u32 s{S_T0}, s{S_T0}, {WS_W2P}
        s_cmp_lt_u32 s{S_WAVE}, 7
        s_cselect_b32 s{S_T1}, 0, {OOB}
        v_lshl_add_u32 v2, v1, 4, s{S_T1}
        """)
        lg.wait("w2tr")
        a(f"buffer_store_dwordx4 {vr(VW2F,4)}, v2, {S(SRD_WS)}, s{S_T0} offen sc1")
        vm.issue("pst")

    def kvt_read():
        a(f"""
        s_lshr_b32 s{S_T0}, s{S_WAVE}, 2
        s_lshl_b32 s{S_T0}, s{S_T0}, 2
        v_lshrrev_b32 v2, 4, v1
        v_add_u32 v2, s{S_T0}, v2
        v_bfe_u32 v3, v1, 2, 2
        v_lshl_add_u32 v3, v2, 3, v3
        v_lshlrev_b32 v3, 7, v3
        v_and_b32 v4, 3, v1
        s_and_b32 s{S_T1}, s{S_WAVE}, 3
        s_lshl_b32 s{S_T2}, s{S_T1}, 5
        s_add_u32 s{S_T2}, s{S_T2}, {LT}
        v_lshl_add_u32 v4, v4, 3, s{S_T2}
        v_add_u32 v3, v3, v4
        ds_read_b64_tr_b16 {vr(T+24,2)}, v3
        ds_read_b64_tr_b16 {vr(T+26,2)}, v3 offset:512
        s_lshl_b32 s{S_T2}, s{S_CG}, 6
        s_lshl_b32 s{S_T1}, s{S_T1}, 4
        s_add_u32 s{S_T2}, s{S_T2}, s{S_T1}
        v_and_b32 v4, 15, v1
        v_add_u32 v4, s{S_T2}, v4
        v_lshlrev_b32 v4, 12, v4
        v_lshl_add_u32 v11, v2, 4, v4
        """)
        lg.issue("kvtr", 2)

    def kvt_store():
        a(f"""
        s_lshl_b32 s{S_T1}, s{S_RBK}, 7
        s_sub_u32 s{S_T1}, {WS_KVT + 1984*2}, s{S_T1}
        """)
        lg.wait("kvtr")
        a(f"buffer_store_dwordx4 {vr(T+24,4)}, v11, {S(SRD_WS)}, s{S_T1} offen sc1")
        vm.issue("pst")

    def gate_part(h):
        def f():
            if h == 0:
                vm.wait("g")
                lg.wait("gwr")
                a(f"v_mov_b32 v{T+4}, 0")
            for d in range(2*h, 2*h+2):
                a(f"""
                v_lshlrev_b32 v{T}, 16, v{VGX+d}
                v_and_b32 v{T+1}, 0xffff0000, v{VGX+d}
                v_lshlrev_b32 v{T+2}, 16, v{VGW+d}
                v_and_b32 v{T+3}, 0xffff0000, v{VGW+d}
                v_pk_mul_f32 {vr(T,2)}, {vr(T,2)}, {vr(T+2,2)}
                v_cvt_pk_bf16_f32 v{T}, v{T}, v{T+1}
                v_lshlrev_b32 v{T+1}, 16, v{T}
                v_and_b32 v{T}, 0xffff0000, v{T}
                v_add_f32 v{T+4}, v{T+4}, v{T+1}
                v_add_f32 v{T+4}, v{T+4}, v{T}
                """)
        return f

    def gate_fin():
        a(f"""
        s_nop 1
        v_add_f32_dpp v{T+4}, v{T+4}, v{T+4} quad_perm:[1,0,3,2] row_mask:0xf bank_mask:0xf
        s_nop 1
        v_add_f32_dpp v{T+4}, v{T+4}, v{T+4} quad_perm:[2,3,0,1] row_mask:0xf bank_mask:0xf
        s_nop 1
        v_add_f32_dpp v{T+4}, v{T+4}, v{T+4} row_half_mirror row_mask:0xf bank_mask:0xf
        s_nop 1
        v_add_f32_dpp v{T+4}, v{T+4}, v{T+4} row_mirror row_mask:0xf bank_mask:0xf
        v_mov_b32 v{T+5}, v{T+4}
        s_nop 1
        v_permlane16_swap_b32 v{T+4}, v{T+5}
        s_nop 1
        v_add_f32 v{T+4}, v{T+4}, v{T+5}
        v_cvt_pk_bf16_f32 v{T+4}, v{T+4}, v{T+4}
        v_lshlrev_b32 v{T+4}, 16, v{T+4}
        v_mul_f32 v{T+4}, 0xbfb8aa3b, v{T+4}
        v_exp_f32 v{T+4}, v{T+4}
        s_nop 0
        v_add_f32 v{T+4}, 1.0, v{T+4}
        v_rcp_f32 v{T+4}, v{T+4}
        s_nop 0
        v_cvt_pk_bf16_f32 v{T+4}, v{T+4}, v{T+4}
        v_lshlrev_b32 v{T+4}, 16, v{T+4}
        v_and_b32 v2, 31, v1
        v_cmp_eq_u32 vcc, 0, v2
        v_lshlrev_b32 v3, 2, v{VGROW}
        v_add_u32 v3, {WS_G}, v3
        s_cmp_lt_u32 s2, 128
        s_cselect_b64 vcc, vcc, 0
        v_cndmask_b32 v3, v10, v3, vcc
        buffer_store_dword v{T+4}, v3, {S(SRD_WS)}, 0 offen sc1
        """)
        vm.issue("pst")

    VNON = 30
    def nonce_load():
        a(f"""
        v_mov_b32 v9, 0
        buffer_load_dwordx2 v[{VNON}:{VNON+1}], v9, {S(SRD_DBG)}, 0 offen sc1
        """)
        vm.issue("non")

    def nonce_check():
        vm.wait("non")
        l_ok = a.newlabel("L_nok")
        l_re = a.newlabel("L_nre")
        a(f"""
        v_readfirstlane_b32 s{S_NON}, v{VNON}
        v_readfirstlane_b32 s{S_NON+1}, v{VNON+1}
        s_cmp_lg_u32 s{S_NON}, 0
        s_cbranch_scc1 {l_ok}
        """)
        a.label(l_re)
        a(f"""
        s_cmp_eq_u32 s{S_SPIN}, 0
        s_cbranch_scc1 {l_ok}
        s_sub_u32 s{S_SPIN}, s{S_SPIN}, 1
        s_sleep {P["sleep"]}
        buffer_load_dwordx2 v[{VNON}:{VNON+1}], v9, {S(SRD_DBG)}, 0 offen sc1
        s_waitcnt vmcnt(0)
        v_readfirstlane_b32 s{S_NON}, v{VNON}
        v_readfirstlane_b32 s{S_NON+1}, v{VNON+1}
        s_cmp_eq_u32 s{S_NON}, 0
        s_cbranch_scc1 {l_re}
        """)
        a.label(l_ok)

    FSH = P["fsh"]
    def flag_store(soff_expr_lines, sreg):
        a(soff_expr_lines)
        a(f"""
        v_mov_b32 v2, s{S_NON}
        v_mov_b32 v3, s{S_NON+1}
        v_cmp_eq_u32 vcc, 0, v1
        v_mov_b32 v4, {OOB}
        s_nop 0
        v_cndmask_b32 v4, v4, 0, vcc
        buffer_store_dwordx2 v[2:3], v4, {S(SRD_WS)}, s{sreg} offen sc1
        """)
        vm.issue("flag")

    def prep_flag():
        a(f"""
        s_lshl_b32 s{S_T0}, s{S_CT2}, 5
        s_add_u32 s{S_T0}, s{S_T0}, s{S_RT2}
        s_add_u32 s{S_T0}, s{S_T0}, 224
        s_lshl_b32 s{S_T0}, s{S_T0}, {FSH}
        s_lshl_b32 s{S_T1}, s2, {FSH}
        v_mov_b32 v2, s{S_NON}
        v_mov_b32 v3, s{S_NON+1}
        v_cmp_eq_u32 vcc, 0, v0
        v_mov_b32 v4, {OOB}
        v_mov_b32 v5, s{S_T1}
        v_cndmask_b32 v4, v4, v5, vcc
        v_cmp_eq_u32 vcc, 1, v0
        v_mov_b32 v5, s{S_T0}
        s_mov_b32 s{S_T0}, {FP}
        v_cndmask_b32 v4, v4, v5, vcc
        buffer_store_dwordx2 v[2:3], v4, {S(SRD_WS)}, s{S_T0} offen sc1
        """)
        vm.issue("flag")

    def kbuf_dma():
        a(f"""
        v_lshlrev_b32 v2, 4, v1
        s_lshr_b32 s{S_T1}, s{S_WAVE}, 2
        s_and_b32 s{S_T2}, s{S_WAVE}, 3
        s_mul_i32 s{S_T3}, s{S_T1}, 4608
        s_lshl_b32 s{S_T2}, s{S_T2}, 10
        s_add_u32 s{S_T3}, s{S_T3}, s{S_T2}
        s_add_u32 m0, s{S_T3}, {KB + 480}
        s_lshl_b32 s{S_T0}, s2, 13
        s_lshl_b32 s{S_T3}, s{S_WAVE}, 10
        s_add_u32 s{S_T0}, s{S_T0}, s{S_T3}
        buffer_load_dwordx4 v2, {S(SRD_SK)}, s{S_T0} offen lds
        """)
        vm.issue("K")

    VPA = 22
    def prep_poll_issue():
        a(f"""
        s_lshl_b32 s{S_T0}, s{S_WAVE}, 2
        s_lshl_b32 s{S_T1}, s{S_CT2}, 5
        s_add_u32 s{S_T0}, s{S_T0}, s{S_T1}
        s_add_u32 s{S_T0}, s{S_T0}, 224
        v_add_u32 v2, s{S_T0}, v1
        s_lshr_b32 s{S_T1}, s{S_WAVE}, 1
        s_lshl_b32 s{S_T1}, s{S_T1}, 5
        s_add_u32 s{S_T1}, s{S_T1}, s{S_RT2}
        v_mov_b32 v3, s{S_T1}
        v_cmp_gt_u32 vcc, 4, v1
        s_lshl_b32 s{S_T2}, s{S_CG}, 5
        s_sub_u32 s{S_T2}, s{S_T2}, 32
        v_cndmask_b32 v2, v3, v2, vcc
        v_add_u32 v3, s{S_T2}, v1
        v_cmp_gt_u32 vcc, 32, v1
        s_mov_b32 s{S_T5}, {FP}
        s_nop 0
        v_cndmask_b32 v2, v3, v2, vcc
        v_lshlrev_b32 v{VPA}, {FSH}, v2
        buffer_load_dwordx2 v[{VNON}:{VNON+1}], v{VPA}, {S(SRD_WS)}, s{S_T5} offen sc1
        """)
        vm.issue("poll")

    W = 100
    def prep_poll_check_and_loads():
        vm.wait("poll")
        a(f"s_mov_b32 s{S_T5}, {FP}")
        poll_check(VNON, VPA, S_T5)
        a(f"""
        v_lshlrev_b32 v3, 4, v0
        v_add_u32 v4, 16, v3
        v_and_b32 v5, 255, v0
        v_cmp_ne_u32 vcc, 255, v5
        s_lshl_b32 s{S_T0}, s2, 13
        s_add_u32 s{S_T0}, s{S_T0}, {WS_KVT}
        v_cndmask_b32 v4, v10, v4, vcc
        buffer_load_dwordx4 {vr(W,4)}, v3, {S(SRD_WS)}, s{S_T0} offen sc1
        buffer_load_dwordx4 {vr(W+4,4)}, v4, {S(SRD_WS)}, s{S_T0} offen sc1
        """)
        vm.issue("U", 2)
        a(f"""
        s_mul_i32 s{S_WB}, s{S_CT2}, 112
        s_mul_i32 s{S_T0}, s{S_WAVE}, 14
        s_add_u32 s{S_WB}, s{S_WB}, s{S_T0}
        s_lshl_b32 s{S_WB}, s{S_WB}, 11
        s_add_u32 s{S_WB}, s{S_WB}, {WS_W2P}
        s_mov_b32 s{S_R0}, s{S_ROT2}
        v_lshlrev_b32 v{VL16}, 4, v1
        """)

    VL16 = 31
    def w2p_load(j):
        def f():
            a(f"""
            s_lshl_b32 s{S_T0}, s{S_R0}, 11
            s_add_u32 s{S_T0}, s{S_T0}, s{S_WB}
            s_add_u32 s{S_R0}, s{S_R0}, 1
            buffer_load_dwordx4 {vr(W2R+8*j,4)}, v{VL16}, {S(SRD_WS)}, s{S_T0} offen sc1
            buffer_load_dwordx4 {vr(W2R+8*j+4,4)}, v{VL16}, {S(SRD_WS)}, s{S_T0} offen offset:1024 sc1
            s_cmp_eq_u32 s{S_R0}, 14
            s_cselect_b32 s{S_R0}, 0, s{S_R0}
            """)
            vm.issue(f"w2_{j}", 2)
        return f

    Bq, Cq, Dq = 108, 114, 120
    VUW = 15
    def ubuf_prep():
        a(f"""
        v_lshrrev_b32 v6, 8, v0
        v_mul_u32_u24 v6, {8*UP}, v6
        v_and_b32 v5, 255, v0
        v_lshl_add_u32 v{VUW}, v5, 4, v6
        v_mov_b32 v4, 0
        v_mov_b32 v5, 0
        v_mov_b32 v6, 0
        v_mov_b32 v7, 0
        v_and_b32 v2, 15, v1
        v_mul_u32_u24 v2, {UP}, v2
        ds_write_b128 v2, v[4:7] offset:{UB + 4096}
        """)
        lg.issue("uw")
        vm.wait("U")
        for i in range(6):
            a(f"v_mov_b32 v{Bq+i}, v{W+1+i}")
        for i in range(6):
            a(f"v_alignbyte_b32 v{Cq+i}, v{W+i+1}, v{W+i}, 2")
        for i in range(6):
            a(f"v_alignbyte_b32 v{Dq+i}, v{W+i+2}, v{W+i+1}, 2")

    def ubuf_write(p):
        def f():
            e = 7 - p
            aa = e >> 1
            if e & 1:
                src = (Cq + aa) if aa % 2 == 0 else (Dq + aa - 1)
            else:
                src = (W + aa) if aa % 2 == 0 else (Bq + aa - 1)
            a(f"ds_write_b128 v{VUW}, {vr(src,4)} offset:{UB + p*UP}")
            lg.issue("uw")
        return f

    b0 = P["kv_bar"]
    side[b0] += [kv_reads, gw_reads, w2p_read]
    side[b0+1] += [kv_part(0), kv_part(1)]
    side[b0+2] += [kv_part(2), kv_part(3)]
    side[b0+3] += [w2p_store, nonce_load, gate_part(0)]
    side[b0+4] += [kvt_read, gate_part(1), kbuf_zero]
    side[b0+5] += [gate_part(2), kvt_store]
    side[b0+6] += [gate_part(3), kbuf_dma]
    side[b0+7] += [gate_fin, nonce_check]
    PST_BARRIER = P["pst_bar"]
    side[PST_BARRIER] += [prep_flag]
    side[P["poll_at"]] += [prep_poll_issue]

    def reads(n):
        t, ks = n >> 2, n & 3
        base = STG[t % 4]
        win = base >= 65536
        off = base - (65536 if win else 0)
        fb = FR + 12 * (n % 3)
        vb = (VBB if win else VBA) + ks
        va = VAB if win else VAA
        a(f"ds_read_b128 {vr(fb+8,4)}, v{vb} offset:{off}")
        for ft in range(2):
            for part in range(2):
                a(f"ds_read_b64_tr_b16 {vr(fb+4*ft+2*part,2)}, v{va+ft} offset:{off+16384+4096*ks+1024*part}")
        lg.issue(f"r{n}", 5)

    vm.wait("c0")
    lg.wait_all()
    a("s_barrier")
    stamp()
    a(f"""
    s_and_b32 s{S_T0}, s{S_WAVE}, 1
    s_lshl_b32 s{S_T0}, s{S_T0}, 7
    s_add_u32 s{S_T0}, s{S_T0}, {LSM+1024}
    v_lshrrev_b32 v2, 5, v1
    v_lshl_add_u32 v2, v2, 3, s{S_T0}
    """)
    for i in range(8):
        a(f"ds_read_b64 {vr(VB+2*i,2)}, v2 offset:{16*i}")
    lg.issue("b", 8)
    reads(0); reads(1)
    lg.wait("b")
    for ft in range(2):
        for g in range(4):
            for jj in range(2):
                src = VB + 2*(4*ft+g) + jj
                a(f"v_lshlrev_b32 v{ACC1+16*ft+4*g+2*jj}, 16, v{src}")
                a(f"v_and_b32 v{ACC1+16*ft+4*g+2*jj+1}, 0xffff0000, v{src}")
    a("s_nop 1")
    for n in range(28):
        fb = FR + 12 * (n % 3)
        bar = ((n + 2) & 3) == 0 and n + 2 < 28
        lg.wait(f"r{n}")
        a(f"v_mfma_f32_32x32x16_bf16 {vr(ACC1,16)}, {vr(fb,4)}, {vr(fb+8,4)}, {vr(ACC1,16)}")
        if bar:
            t1 = (n + 2) >> 2
            lg.wait_all()
            if n == PST_BARRIER:
                vm.wait("pst")
            if n == b0:
                vm.wait("kv")
            vm.wait(f"c{t1}")
            a("s_barrier")
            stamp()
        if n + 2 < 28:
            reads(n + 2)
        a(f"v_mfma_f32_32x32x16_bf16 {vr(ACC1+16,16)}, {vr(fb+4,4)}, {vr(fb+8,4)}, {vr(ACC1+16,16)}")
        if bar and t1 + 3 <= 6:
            issue_chunk(t1 + 3)
        for f in side[n]:
            f()
    stamp()

    MT = 132
    mish_ops = []
    def mop(s, kind="v"):
        mish_ops.append((s, kind))
    for grp in range(4):
        hb = ACC1 + 8 * grp
        for half in range(2):
            hs = [hb + 4 * half + e for e in range(4)]
            for e in range(4):
                mop(f"v_mul_f32 v{MT+2*e}, s{S_LOG}, v{hs[e]}")
            for e in range(4):
                mop(f"v_exp_f32 v{MT+2*e}, v{MT+2*e}")
            for e in range(4):
                mop(f"v_fma_f32 v{MT+2*e+1}, v{MT+2*e}, 0.5, 1.0")
            for e in range(4):
                mop(f"v_fma_f32 v{MT+2*e}, v{MT+2*e}, v{MT+2*e+1}, 1.0")
            for e in range(4):
                mop(f"v_rcp_f32 v{MT+2*e}, v{MT+2*e}")
            for e in range(4):
                mop(f"v_fma_f32 v{hs[e]}, -v{hs[e]}, v{MT+2*e}, v{hs[e]}")
        for e2 in range(4):
            mop(f"v_cvt_pk_bf16_f32 v{hb+e2}, v{hb+2*e2}, v{hb+2*e2+1}")
        mop(f"buffer_store_dwordx4 {vr(hb,4)}, v{VL16}, {S(SRD_WS)}, s{S_AB} offen offset:{1024*grp} sc1", "st")

    a(f"""
    s_lshr_b32 s{S_T0}, s{S_WAVE}, 1
    s_lshl_b32 s{S_T1}, s{S_RB}, 2
    s_add_u32 s{S_T0}, s{S_T0}, s{S_T1}
    s_mul_i32 s{S_T0}, s{S_T0}, 112
    s_lshl_b32 s{S_T1}, s{S_CB}, 3
    s_add_u32 s{S_T0}, s{S_T0}, s{S_T1}
    s_and_b32 s{S_T1}, s{S_WAVE}, 1
    s_lshl_b32 s{S_T1}, s{S_T1}, 2
    s_add_u32 s{S_T0}, s{S_T0}, s{S_T1}
    s_lshl_b32 s{S_AB}, s{S_T0}, 10
    s_mov_b32 s{S_LOG}, 0x3fb8aa3b
    """)
    mi = [0]
    wq = [0]
    def emit_w2(k):
        for _ in range(k):
            if wq[0] < 14:
                w2p_load(wq[0])()
                wq[0] += 1
    def emit_mish(k):
        for _ in range(k):
            if mi[0] >= len(mish_ops):
                return
            s, kind = mish_ops[mi[0]]
            mi[0] += 1
            a(s)
            if kind == "st":
                vm.issue("act")
    prep_poll_check_and_loads()
    stamp()
    emit_w2(1)
    emit_mish(24)
    emit_w2(1)
    emit_mish(29)
    emit_w2(1)
    stamp()
    ubuf_prep()
    for p in range(8):
        ubuf_write(p)()
    VA, VBk = 8, 9
    a(f"""
    s_lshr_b32 s{S_T1}, s{S_WAVE}, 2
    s_bfe_u32 s{S_T2}, s{S_WAVE}, 0x10001
    s_sub_u32 s{S_T2}, 1, s{S_T2}
    s_lshl_b32 s{S_T2}, s{S_T2}, 8
    s_mul_i32 s{S_T3}, s{S_T1}, {8*UP}
    s_add_u32 s{S_T3}, s{S_T3}, s{S_T2}
    s_add_u32 s{S_T3}, s{S_T3}, {UB + 16}
    v_and_b32 v2, 7, v1
    v_mul_u32_u24 v2, {UP}, v2
    v_bfe_u32 v3, v1, 3, 1
    v_lshrrev_b32 v4, 4, v1
    v_sub_u32 v3, v4, v3
    v_lshlrev_b32 v3, 4, v3
    v_add3_u32 v{VA}, v2, v3, s{S_T3}
    s_mul_i32 s{S_T3}, s{S_T1}, 4608
    s_add_u32 s{S_T3}, s{S_T3}, s{S_T2}
    s_add_u32 s{S_T3}, s{S_T3}, {KB}
    v_and_b32 v2, 15, v1
    v_lshlrev_b32 v2, 5, v2
    v_lshl_add_u32 v2, v4, 4, v2
    v_add_u32 v{VBk}, s{S_T3}, v2
    """)
    vm.wait("K")
    lg.wait_all()
    a("s_barrier")
    stamp()

    CACC = 116
    POOL = [64 + 4 * i for i in range(13)]
    RSETS = [[0, 1, 6, 7], [2, 3, 4, 5]]
    lab_rs1 = a.newlabel("L_cv_rs1")
    lab_join = a.newlabel("L_cv_join")
    a(f"""
    s_and_b32 s{S_T0}, s{S_WAVE}, 1
    s_cmp_eq_u32 s{S_T0}, 1
    s_cbranch_scc1 {lab_rs1}
    """)
    vm_save = list(vm.ops); lg_save = list(lg.ops); mi_save = mi[0]; wq_save = wq[0]
    MPER = P["mper"]
    FLAG_AT = P["flag_at"]
    for rs in range(2):
        if rs == 1:
            a.label(lab_rs1)
            vm.ops = list(vm_save); lg.ops = list(lg_save); mi[0] = mi_save; wq[0] = wq_save
        rset = RSETS[rs]
        rmax = max(rset)
        seq = []
        for rp in range(4):
            order = range(rmax + 1) if rp % 2 == 0 else range(rmax, -1, -1)
            for b in order:
                for ri, r in enumerate(rset):
                    if r >= b:
                        seq.append((rp, ri, ("A", rp, b), ("B", rp, r - b)))
        last = {}
        firstorder = []
        for i, (rp, ri, fa, fbk) in enumerate(seq):
            for f in (fa, fbk):
                if f not in last:
                    firstorder.append(f)
                last[f] = i
        free = list(POOL)
        loc = {}
        nxt = [0]
        def issue_loads():
            while nxt[0] < len(firstorder) and free:
                f = firstorder[nxt[0]]
                reg = free.pop(0)
                loc[f] = reg
                if f[0] == "A":
                    a(f"ds_read_b128 {vr(reg,4)}, v{VA} offset:{64*(59-8*f[2]-f[1])}")
                else:
                    a(f"ds_read_b128 {vr(reg,4)}, v{VBk} offset:{64*(8*f[2]+3-f[1])}")
                lg.issue(f)
                nxt[0] += 1
        started = set()
        issue_loads()
        for i, (rp, ri, fa, fbk) in enumerate(seq):
            assert fa in loc and fbk in loc, (i, fa, fbk)
            lg.wait(fa); lg.wait(fbk)
            c = vr(CACC + 4 * ri, 4) if ri in started else "0"
            started.add(ri)
            a(f"v_mfma_f32_16x16x32_bf16 {vr(CACC+4*ri,4)}, {vr(loc[fa],4)}, {vr(loc[fbk],4)}, {c}")
            for f in (fa, fbk):
                if last[f] == i and loc[f] not in free:
                    free.append(loc[f])
            issue_loads()
            emit_mish(MPER)
            if i % P["w2_every"] == 0:
                emit_w2(1)
            if i == FLAG_AT:
                assert mi[0] >= len(mish_ops)
                vm.wait("act")
                flag_store(f"""
                s_mul_i32 s{S_T0}, s{S_RB}, 28
                s_lshl_b32 s{S_T1}, s{S_CB}, 1
                s_add_u32 s{S_T0}, s{S_T0}, s{S_T1}
                s_and_b32 s{S_T1}, s{S_WAVE}, 1
                s_add_u32 s{S_T0}, s{S_T0}, s{S_T1}
                s_lshl_b32 s{S_T0}, s{S_T0}, 2
                s_lshr_b32 s{S_T1}, s{S_WAVE}, 1
                s_add_u32 s{S_T0}, s{S_T0}, s{S_T1}
                s_lshl_b32 s{S_T0}, s{S_T0}, {FSH}
                s_add_u32 s{S_T0}, s{S_T0}, {FA}
                """, S_T0)
        emit_w2(14)
        a(f"""
        s_bfe_u32 s{S_T2}, s{S_WAVE}, 0x10001
        s_cmp_eq_u32 s{S_T2}, 0
        s_cselect_b32 s{S_R0}, {rset[0]}, {rset[2]}
        s_cselect_b32 s{S_R1}, {rset[1]}, {rset[3]}
        """)
        if rs == 0:
            a(f"s_branch {lab_join}")
            vm_end = list(vm.ops)
        else:
            assert vm_end == vm.ops
    a.label(lab_join)
    lg.ops = ["x"] * 15
    stamp()

    AF = 24
    ACC2 = 80
    a(f"""
    s_mul_i32 s{S_T0}, s{S_WAVE}, 14
    s_add_u32 s{S_T1}, s{S_T0}, 13
    s_lshr_b32 s{S_T0}, s{S_T0}, 2
    s_lshr_b32 s{S_T1}, s{S_T1}, 2
    v_lshrrev_b32 v2, 1, v1
    v_add_u32 v2, s{S_T0}, v2
    v_min_u32 v2, s{S_T1}, v2
    s_lshr_b32 s{S_T2}, s{S_RT2}, 1
    s_mul_i32 s{S_T2}, s{S_T2}, 28
    v_add_u32 v2, s{S_T2}, v2
    s_and_b32 s{S_T2}, s{S_RT2}, 1
    s_lshl_b32 s{S_T2}, s{S_T2}, 1
    v_and_b32 v3, 1, v1
    v_add_u32 v3, s{S_T2}, v3
    v_lshl_add_u32 v2, v2, 2, v3
    v_lshlrev_b32 v{VPA}, {FSH}, v2
    s_mov_b32 s{S_T5}, {FA}
    buffer_load_dwordx2 v[6:7], v{VPA}, {S(SRD_WS)}, s{S_T5} offen sc1
    """)
    vm.issue("poll")
    lab_cs1 = a.newlabel("L_cv_cs1")
    lab_j2 = a.newlabel("L_cv_j2")
    a(f"""
    s_lshl_b32 s{S_T3}, s{S_WAVE}, 11
    v_add_u32 v3, s{S_T3}, v{VL16}
    s_xor_b32 s{S_T3}, s{S_T3}, 0x1000
    v_add_u32 v4, s{S_T3}, v{VL16}
    s_bfe_u32 s{S_T2}, s{S_WAVE}, 0x10001
    s_cmp_eq_u32 s{S_T2}, 0
    s_cbranch_scc0 {lab_cs1}
    ds_write_b128 v3, {vr(CACC+8,4)} offset:{XB}
    ds_write_b128 v3, {vr(CACC+12,4)} offset:{XB+1024}
    s_branch {lab_j2}
    """)
    a.label(lab_cs1)
    a(f"""
    ds_write_b128 v3, {vr(CACC,4)} offset:{XB}
    ds_write_b128 v3, {vr(CACC+4,4)} offset:{XB+1024}
    s_nop 1
    """)
    for i in range(8):
        a(f"v_mov_b32 v{CACC+i}, v{CACC+8+i}")
    a.label(lab_j2)
    TT = 80
    a(f"""
    s_lshr_b32 s{S_T3}, s{S_WAVE}, 2
    s_mul_i32 s{S_T2}, s{S_T3}, {8*UP}
    s_add_u32 s{S_T2}, s{S_T2}, {UB + 7*UP + 4088}
    v_and_b32 v5, 15, v1
    v_lshrrev_b32 v11, 4, v1
    v_lshlrev_b32 v2, 5, v5
    v_lshl_add_u32 v2, v11, 3, v2
    v_sub_u32 v2, s{S_T2}, v2
    s_lshl_b32 s{S_T2}, s{S_R0}, 9
    v_subrev_u32 v12, s{S_T2}, v2
    s_lshl_b32 s{S_T2}, s{S_R1}, 9
    v_subrev_u32 v13, s{S_T2}, v2
    ds_read_b64 v[{TT+8}:{TT+9}], v12
    ds_read_b64 v[{TT+10}:{TT+11}], v13
    s_waitcnt lgkmcnt(0)
    s_barrier
    ds_read_b128 {vr(TT,4)}, v4 offset:{XB}
    ds_read_b128 {vr(TT+4,4)}, v4 offset:{XB+1024}
    """)
    lg.clear()
    lg.issue("xr", 2)
    vm.wait("poll")
    poll_check(6, VPA, S_T5)
    a(f"""
    s_mul_i32 s{S_AB}, s{S_RT2}, {2*112}
    s_mul_i32 s{S_T0}, s{S_WAVE}, 14
    s_add_u32 s{S_AB}, s{S_AB}, s{S_T0}
    s_lshl_b32 s{S_AB}, s{S_AB}, 10
    s_mov_b32 s{S_KC}, s{S_ROT2}
    """)
    def actload(st, j):
        a(f"""
        s_lshl_b32 s{S_T0}, s{S_KC}, 10
        s_add_u32 s{S_T0}, s{S_T0}, s{S_AB}
        s_add_u32 s{S_KC}, s{S_KC}, 1
        buffer_load_dwordx4 {vr(AF+4*j,4)}, v{VL16}, {S(SRD_WS)}, s{S_T0} offen sc1
        s_cmp_eq_u32 s{S_KC}, 14
        s_cselect_b32 s{S_KC}, 0, s{S_KC}
        """)
        vm.issue(f"a{st}_{j}")
    VL = 21
    a(f"v_mov_b32 v{VL}, v{VL16}")
    VL16 = VL
    for j in range(14):
        actload(0, j)
    a(f"s_add_u32 s{S_AB}, s{S_AB}, {112*1024}")
    stamp()
    a(f"""
    s_lshl_b32 s{S_T2}, s{S_D}, 16
    s_and_b32 s{S_T4}, s{S_D}, 0xffff0000
    s_cmp_eq_u32 s{S_T3}, 0
    s_cselect_b32 s{S_T4}, s{S_T2}, s{S_T4}
    v_mov_b32 v13, s{S_R0}
    v_mov_b32 v14, s{S_R1}
    v_and_b32 v15, 1, v11
    v_cmp_eq_u32 vcc, 0, v15
    v_lshrrev_b32 v15, 1, v11
    v_lshlrev_b32 v7, 5, v5
    v_cndmask_b32 v13, v14, v13, vcc
    v_lshl_add_u32 v7, v15, 4, v7
    v_lshl_add_u32 v7, v13, 9, v7
    s_lshl_b32 s{S_T2}, s2, 1
    s_add_u32 s{S_T2}, s{S_T2}, s{S_T3}
    s_lshl_b32 s{S_T5}, s{S_T2}, 2
    s_lshl_b32 s{S_T2}, s{S_T2}, 12
    s_add_u32 s{S_T2}, s{S_T2}, {WS_Y2T}
    """)
    lg.wait("xr")
    R = TT + 12
    for ri in range(2):
        kvr = TT + 8 + 2 * ri
        a(f"""
        v_and_b32 v{TT+16}, 0xffff0000, v{kvr+1}
        v_lshlrev_b32 v{TT+17}, 16, v{kvr+1}
        v_and_b32 v{TT+18}, 0xffff0000, v{kvr}
        v_lshlrev_b32 v{TT+19}, 16, v{kvr}
        """)
        for j in range(4):
            a(f"v_add_f32 v{CACC+4*ri+j}, v{CACC+4*ri+j}, v{TT+4*ri+j}")
            a(f"v_fmac_f32 v{CACC+4*ri+j}, s{S_T4}, v{TT+16+j}")
        a(f"v_cvt_pk_bf16_f32 v{R+2*ri}, v{CACC+4*ri}, v{CACC+4*ri+1}")
        a(f"v_cvt_pk_bf16_f32 v{R+2*ri+1}, v{CACC+4*ri+2}, v{CACC+4*ri+3}")
    a(f"""
    s_nop 1
    v_permlane16_swap_b32 v{R}, v{R+2}
    v_permlane16_swap_b32 v{R+1}, v{R+3}
    s_nop 1
    v_mov_b32 v16, v{R}
    v_mov_b32 v17, v{R+1}
    v_mov_b32 v18, v{R+2}
    v_mov_b32 v19, v{R+3}
    buffer_store_dwordx4 v[16:19], v7, {S(SRD_WS)}, s{S_T2} offen sc1
    """)
    vm.issue("yst")
    a(f"""
    s_and_b32 s{S_T0}, s{S_WAVE}, 3
    s_add_u32 s{S_T5}, s{S_T5}, s{S_T0}
    s_lshl_b32 s{S_T5}, s{S_T5}, {FSH}
    s_add_u32 s{S_R0}, s{S_T5}, {FY}
    """)
    VQ = 12
    VG = 11
    VO = 10
    VOMG = 20
    a(f"""
    s_lshr_b32 s{S_T0}, s{S_WAVE}, 1
    s_lshl_b32 s{S_T0}, s{S_T0}, 4
    s_lshl_b32 s{S_T1}, s{S_RT2}, 6
    s_add_u32 s{S_T0}, s{S_T0}, s{S_T1}
    v_and_b32 v2, 15, v1
    v_add_u32 v2, s{S_T0}, v2
    s_and_b32 s{S_T0}, s{S_WAVE}, 1
    s_lshl_b32 s{S_T0}, s{S_T0}, 2
    v_lshrrev_b32 v3, 4, v1
    v_add_u32 v{VO}, s{S_T0}, v3
    s_movk_i32 s{S_T2}, 896
    v_mul_lo_u32 v3, v2, s{S_T2}
    v_lshl_add_u32 v3, v{VO}, 4, v3
    s_lshl_b32 s{S_T0}, s{S_CT2}, 7
    v_lshlrev_b32 v2, 2, v2
    s_mov_b32 s{S_T2}, {WS_G}
    buffer_load_dwordx4 {vr(VQ,4)}, v3, {S(SRD_Q)}, s{S_T0} offen
    buffer_load_dword v{VG}, v2, {S(SRD_WS)}, s{S_T2} offen sc1
    """)
    vm.issue("q", 2)
    a(f"""
    s_lshl_b32 s{S_T0}, s{S_WAVE}, 3
    s_add_u32 s{S_T0}, s{S_T0}, s{S_T1}
    v_bfe_u32 v2, v1, 3, 1
    v_lshrrev_b32 v3, 4, v1
    v_lshl_add_u32 v2, v2, 2, v3
    v_add_u32 v2, s{S_T0}, v2
    v_lshlrev_b32 v3, 2, v2
    buffer_load_dword v{VOMG}, v3, {S(SRD_WS)}, s{S_T2} offen sc1
    s_movk_i32 s{S_T2}, 896
    v_mul_lo_u32 v2, v2, s{S_T2}
    v_and_b32 v3, 7, v1
    v_lshl_add_u32 v2, v3, 3, v2
    s_lshl_b32 s{S_T0}, s{S_CT2}, 7
    v_add_u32 v9, s{S_T0}, v2
    """)
    vm.issue("q")
    VOUT = 9
    stamp()

    def mf2(st, dt, j, first):
        ac = ACC2 + 32 * st + 16 * dt
        c = "0" if first else vr(ac, 16)
        a(f"v_mfma_f32_32x32x16_bf16 {vr(ac,16)}, {vr(AF+4*j,4)}, {vr(W2R+8*j+4*dt,4)}, {c}")
    for j in range(14):
        vm.wait(f"w2_{j}")
        vm.wait(f"a0_{j}")
        mf2(0, 0, j, j == 0)
        mf2(0, 1, j, j == 0)
        actload(1, j)
        if j == 6:
            vm.wait("yst")
            flag_store("", S_R0)
    stamp()
    a(f"""
    s_lshr_b32 s{S_T0}, s{S_RT2}, 3
    s_lshr_b32 s{S_T1}, 0x2310, 0
    s_lshl_b32 s{S_T0}, s{S_T0}, 2
    s_lshr_b32 s{S_T1}, s{S_T1}, s{S_T0}
    s_and_b32 s{S_T1}, s{S_T1}, 3
    s_lshl_b32 s{S_T0}, s{S_CT2}, 6
    s_lshl_b32 s{S_T2}, s{S_WAVE}, 3
    s_add_u32 s{S_T0}, s{S_T0}, s{S_T2}
    v_lshrrev_b32 v2, 3, v1
    v_add_u32 v2, s{S_T0}, v2
    v_lshl_add_u32 v3, v2, 2, s{S_T1}
    v_lshlrev_b32 v{VPA}, {FSH}, v3
    s_mov_b32 s{S_T5}, {FY}
    buffer_load_dwordx2 v[6:7], v{VPA}, {S(SRD_WS)}, s{S_T5} offen sc1
    v_lshlrev_b32 v2, 12, v2
    v_and_b32 v3, 7, v1
    v_lshl_add_u32 v8, v3, 4, v2
    s_lshl_b32 s{S_T1}, s{S_RT2}, 7
    s_add_u32 s{S_R1}, s{S_T1}, {WS_Y2T}
    s_lshl_b32 s{S_M0}, s{S_WAVE}, 8
    s_barrier
    """)
    vm.issue("poll")
    pw = []
    def pwrite(reg):
        lo = reg < 32
        if not pw or pw[-1] != lo:
            a(f"s_add_u32 m0, s{S_M0}, {PART + (0 if lo else 63492)}")
            a("s_nop 0")
            pw.append(lo)
        off = reg * 2048 - (0 if lo else 63492)
        a(f"ds_write_addtid_b32 v{ACC2+reg} offset:{off}")
        lg.issue("pw")
    for j in range(14):
        vm.wait(f"a1_{j}")
        mf2(1, 0, j, j == 0)
        if j >= 1:
            for r in range(3 * (j - 1), min(32, 3 * j)):
                pwrite(r)
        if j == 13:
            pass
    vm.wait("poll")
    poll_check(6, VPA, S_T5)
    a(f"buffer_load_dwordx4 v[16:19], v8, {S(SRD_WS)}, s{S_R1} offen sc1")
    vm.issue("y")
    for j in range(14):
        mf2(1, 1, j, j == 0)
        if j >= 2:
            for r in range(32 + 2 * (j - 2), min(48, 32 + 2 * (j - 1))):
                pwrite(r)
    stamp()
    a(f"""
    s_lshl_b32 s{S_T1}, s{S_WAVE}, 10
    s_add_u32 s{S_T1}, s{S_T1}, {YB}
    v_add_u32 v2, s{S_T1}, v{VL16}
    """)
    vm.wait("y")
    a("ds_write_b128 v2, v[16:19]")
    lg.issue("yw")
    a("s_nop 7")
    for r in range(48, 64):
        pwrite(r)
    lg.wait_all()
    a("s_barrier")
    stamp()
    VY = 16
    a(f"""
    v_bfe_u32 v4, v1, 2, 2
    v_lshl_add_u32 v4, v{VO}, 3, v4
    v_lshlrev_b32 v4, 7, v4
    v_and_b32 v5, 3, v1
    v_lshl_add_u32 v4, v5, 3, v4
    s_lshr_b32 s{S_T0}, s{S_WAVE}, 1
    s_lshl_b32 s{S_T0}, s{S_T0}, 5
    s_add_u32 s{S_T0}, s{S_T0}, {YB}
    v_add_u32 v4, s{S_T0}, v4
    ds_read_b64_tr_b16 {vr(VY,2)}, v4
    ds_read_b64_tr_b16 {vr(VY+2,2)}, v4 offset:512
    """)
    lg.issue("ytr", 2)
    RD = 24
    a(f"""
    s_lshr_b32 s{S_T0}, s{S_WAVE}, 2
    s_lshl_b32 s{S_T0}, s{S_T0}, 5
    s_and_b32 s{S_T1}, s{S_WAVE}, 3
    s_lshl_b32 s{S_T1}, s{S_T1}, 2
    s_add_u32 s{S_T0}, s{S_T0}, s{S_T1}
    v_lshrrev_b32 v2, 4, v1
    v_add_u32 v2, s{S_T0}, v2
    v_lshlrev_b32 v2, 11, v2
    v_and_b32 v3, 15, v1
    v_lshl_add_u32 v2, v3, 4, v2
    """)
    for wv in range(8):
        for dt in range(2):
            a(f"ds_read_b128 {vr(RD+8*wv+4*dt,4)}, v2 offset:{PART + dt*32768 + wv*256}")
            lg.issue(f"pr{wv}")
    vm.wait("q")
    a(f"""
    s_lshr_b32 s{S_T0}, s{S_WAVE}, 2
    s_lshl_b32 s{S_T0}, s{S_T0}, 5
    s_bfe_u32 s{S_T1}, s{S_WAVE}, 0x10001
    s_lshl_b32 s{S_T1}, s{S_T1}, 3
    s_add_u32 s{S_T0}, s{S_T0}, s{S_T1}
    s_and_b32 s{S_T1}, s{S_WAVE}, 1
    s_lshl_b32 s{S_T1}, s{S_T1}, 4
    s_add_u32 s{S_T0}, s{S_T0}, s{S_T1}
    v_bfe_u32 v3, v1, 3, 1
    v_lshl_add_u32 v3, v3, 2, s{S_T0}
    v_and_b32 v4, 3, v1
    v_add_u32 v3, v3, v4
    v_lshlrev_b32 v3, 8, v3
    v_bfe_u32 v4, v1, 2, 1
    v_lshl_add_u32 v3, v4, 7, v3
    v_lshrrev_b32 v4, 4, v1
    v_lshl_add_u32 v3, v4, 5, v3
    v_add_u32 v3, {ATERM}, v3
    v_sub_f32 v{VOMG}, 1.0, v{VOMG}
    v_cvt_pk_bf16_f32 v{VOMG}, v{VOMG}, v{VOMG}
    v_lshlrev_b32 v{VOMG}, 16, v{VOMG}
    """)
    lg.wait("ytr")
    AT = 96
    for d in range(4):
        a(f"""
        v_lshlrev_b32 v{AT+2*d}, 16, v{VQ+d}
        v_and_b32 v{AT+2*d+1}, 0xffff0000, v{VQ+d}
        v_lshlrev_b32 v4, 16, v{VY+d}
        v_and_b32 v5, 0xffff0000, v{VY+d}
        v_mul_f32 v{AT+2*d}, v{AT+2*d}, v4
        v_mul_f32 v{AT+2*d+1}, v{AT+2*d+1}, v5
        v_mul_f32 v{AT+2*d}, v{AT+2*d}, v{VG}
        v_mul_f32 v{AT+2*d+1}, v{AT+2*d+1}, v{VG}
        """)
    a(f"""
    ds_write_b128 v3, {vr(AT,4)}
    ds_write_b128 v3, {vr(AT+4,4)} offset:16
    """)
    lg.issue("aw", 2)
    for wv in range(1, 8):
        lg.wait(f"pr{wv}")
        for e in range(0, 8, 2):
            a(f"v_pk_add_f32 {vr(RD+e,2)}, {vr(RD+e,2)}, {vr(RD+8*wv+e,2)}")
    lg.wait_all()
    a(f"""
    s_barrier
    v_lshrrev_b32 v2, 3, v2
    v_and_b32 v2, 0xff00, v2
    v_and_b32 v3, 15, v1
    v_lshl_add_u32 v2, v3, 4, v2
    v_add_u32 v2, {ATERM}, v2
    ds_read_b128 {vr(AT,4)}, v2
    ds_read_b128 {vr(AT+4,4)}, v2 offset:4096
    s_waitcnt lgkmcnt(0)
    """)
    for e in range(8):
        a(f"v_fmac_f32 v{AT+e}, v{VOMG}, v{RD+e}")
    for e in range(4):
        a(f"v_cvt_pk_bf16_f32 v{AT+e}, v{AT+2*e}, v{AT+2*e+1}")
    a(f"""
    buffer_store_dwordx2 {vr(AT,2)}, v{VOUT}, {S(SRD_OUT)}, 0 offen
    buffer_store_dwordx2 {vr(AT+2,2)}, v{VOUT}, {S(SRD_OUT)}, 0 offen offset:64
    """)
    if stamps:
        a("s_waitcnt vmcnt(0)")
        stamp()
        a(f"""
        s_memrealtime s[{S_TM}:{S_TM+1}]
        s_waitcnt lgkmcnt(0)
        v_writelane_b32 v{VST}, s{S_TM}, 30
        """)
        a(f"""
        s_lshl_b32 s{S_T0}, s2, 3
        s_add_u32 s{S_T0}, s{S_T0}, s{S_WAVE}
        s_lshl_b32 s{S_T0}, s{S_T0}, 7
        s_add_u32 s{S_T0}, s{S_T0}, {WS_STAMP}
        v_lshlrev_b32 v2, 2, v1
        v_cmp_gt_u32 vcc, 32, v1
        v_mov_b32 v3, {OOB}
        s_nop 1
        v_cndmask_b32 v2, v3, v2, vcc
        buffer_store_dword v{VST}, v2, {S(SRD_WS)}, s{S_T0} offen
        """)
    a.label("L_end")
    a("s_endpgm")
    hdr = f"; @launch grid=({NWG},1,1) block=(512,1,1) lds={LDS_END}\n"
    out = hdr + '.amdgcn_target "amdgcn-amd-amdhsa--gfx950"\n.text\n' + a.text()
    out += '.section .rodata,"a"\n' + kd(NAME, 256)
    return out


if __name__ == "__main__":
    st = "stamps" in sys.argv[2:]
    for x in sys.argv[2:]:
        if "=" in x:
            k, v = x.split("=")
            assert k in P
            P[k] = int(v)
    open(sys.argv[1], "w").write(gen(st))
```

```python
import sys
sys.path.insert(0, "dev")
from genlib import Asm, vr, sr, kd

NAME = "gated_mix__ssm_conv_h3__dense_activation_mish__prompt_kernel"
NWG = 224
WS_ACT = 0
WS_KVT = 8 << 20
WS_Y2T = 10 << 20
WS_G = 12 << 20
WS_FLAG = 15 << 20
FP = WS_FLAG
FA = WS_FLAG + (64 << 10)
FY = WS_FLAG + (320 << 10)
WS_STAMP = 16 << 20
WS_SIZE = 32 << 20

S_WAVE = 3
S_T0, S_T1, S_T2, S_T3, S_T4, S_T5 = 4, 5, 6, 7, 8, 9
S_RB, S_CB, S_RBK, S_CG, S_RT2, S_CT2 = 10, 11, 12, 13, 14, 15
PTR = dict(q=16, k=18, v=20, sh=22, sk=24, sd=26, bx=28, w1=30, b1=32, w2=34, gw=36, out=38, dbg=40, ws=42)
SRD_Q, SRD_K, SRD_V, SRD_SH, SRD_W1, SRD_B1, SRD_GW, SRD_WS = 44, 48, 52, 56, 60, 64, 68, 72
SRD_SK, SRD_W2, SRD_OUT, SRD_DBG, SRD_QG = 76, 80, 84, 88, 92
S_NON = 96
S_TM = 98
S_D = 100
S_M0 = 101
S_SOX, S_SOW = 28, 29
S_KC, S_ROT2, S_R0, S_R1, S_AB, S_WB = 18, 19, 20, 21, 22, 23
S_LOG, S_SPIN, S_W2K, S_W2M = 32, 33, 36, 37
SIZE = dict(q=2048*448*2, k=2048*448*2, v=2048*448*2, sh=448*4*2, sk=448*2048*2, sd=448*2, w1=448*1792*2,
            b1=1792*2, w2=1792*448*2, gw=448*2, out=2048*448*2, ws=WS_SIZE, dbg=256)
OOB = 0x7fff0000

STG = [0, 32768, 65536]
UB = 32768
UP = 4160
W2S = 99328
LT = W2S
KB = 148480
LSM = 157696
LDS_END = LSM + 3072
KT = KB
XB = 0
PART = 0
ATERM = 131072
YB = 147456

P = dict(mper=6, flag_at=40, sleep=2, fsh=7, rot=1, nt=1, pflag=2, g_ld=3, g_cmp=12, poll_at=15, poll_bar=18, ub_at=24,
         c1pos=1, mpre=24, g2st=0, k_at=0, g_fin=15, wst=0, gst=1,
         w2i="1,5,9,12,15,18,21,24,27,34,44,54,68,78", w2r="11,14,17,20,23,26,33,43,53,67,77,87,97,99")

class Cnt:
    def __init__(self, a, name, cap):
        self.a, self.name, self.cap = a, name, cap
        self.ops = []
    def issue(self, tag, n=1):
        for _ in range(n):
            self.ops.append(tag)
    def wait(self, tag):
        if tag not in self.ops:
            return
        idx = max(i for i, t in enumerate(self.ops) if t == tag)
        n = len(self.ops) - 1 - idx
        if n > self.cap:
            n = self.cap
            idx = len(self.ops) - 1 - n
        self.a(f"s_waitcnt {self.name}({n})")
        self.ops = self.ops[idx + 1:]
    def wait_all(self):
        self.a(f"s_waitcnt {self.name}(0)")
        self.ops = []
    def clear(self):
        self.ops = []


class G:
    pass


def gen(stamps=False):
    a = Asm()
    vm = Cnt(a, "vmcnt", 62)
    lg = Cnt(a, "lgkmcnt", 15)
    nst = [0]
    VST = 23

    def stamp():
        if not stamps:
            return
        a(f"""
        s_memtime s[{S_TM}:{S_TM+1}]
        s_waitcnt lgkmcnt(0)
        v_writelane_b32 v{VST}, s{S_TM}, {nst[0]}
        """)
        lg.clear()
        nst[0] += 1

    def srd(dst, name):
        p = PTR[name]
        a(f"""
        s_mov_b32 s{dst}, s{p}
        s_and_b32 s{dst+1}, s{p+1}, 0xffff
        s_mov_b32 s{dst+2}, {SIZE[name]}
        s_mov_b32 s{dst+3}, 0x00020000
        """)

    def S(x):
        return f"s[{x}:{x+3}]"

    def poll_check(vflag, vaddr, soff_reg):
        l_ok = a.newlabel("L_pok")
        l_re = a.newlabel("L_pre")
        a(f"""
        v_cmp_ne_u64 vcc, s[{S_NON}:{S_NON+1}], v[{vflag}:{vflag+1}]
        s_cbranch_vccz {l_ok}
        """)
        a.label(l_re)
        a(f"""
        s_cmp_eq_u32 s{S_SPIN}, 0
        s_cbranch_scc1 {l_ok}
        s_sub_u32 s{S_SPIN}, s{S_SPIN}, 1
        s_sleep {P["sleep"]}
        buffer_load_dwordx2 v[{vflag}:{vflag+1}], v{vaddr}, {S(SRD_WS)}, s{soff_reg} offen sc1
        s_waitcnt vmcnt(0)
        v_cmp_ne_u64 vcc, s[{S_NON}:{S_NON+1}], v[{vflag}:{vflag+1}]
        s_cbranch_vccnz {l_re}
        """)
        a.label(l_ok)

    a.raw(f".globl {NAME}\n.p2align 8\n.type {NAME},@function")
    a.label(NAME)
    NT = " nt" if P["nt"] else ""
    a(f"""
    s_cmp_ge_u32 s2, {NWG}
    s_cbranch_scc1 L_end
    s_load_dwordx16 s[16:31], s[0:1], 0
    s_load_dwordx8 s[32:39], s[0:1], 64
    s_load_dwordx4 s[40:43], s[0:1], 96
    v_lshrrev_b32 v2, 6, v0
    v_and_b32 v1, 63, v0
    s_and_b32 s{S_T0}, s2, 7
    v_readfirstlane_b32 s{S_WAVE}, v2
    s_lshr_b32 s{S_T1}, s2, 3
    s_mul_i32 s{S_T2}, s{S_T1}, 9363
    s_lshr_b32 s{S_T2}, s{S_T2}, 16
    s_mul_i32 s{S_T3}, s{S_T2}, 7
    s_sub_u32 s{S_T3}, s{S_T1}, s{S_T3}
    """)
    a(f"""
    s_lshr_b32 s{S_RB}, s{S_T0}, 1
    s_lshl_b32 s{S_RB}, s{S_RB}, 2
    s_add_u32 s{S_RB}, s{S_RB}, s{S_T2}
    s_and_b32 s{S_CB}, s{S_T0}, 1
    s_mul_i32 s{S_CB}, s{S_CB}, 7
    s_add_u32 s{S_CB}, s{S_CB}, s{S_T3}
    s_lshr_b32 s{S_CG}, s2, 5
    s_and_b32 s{S_RBK}, s2, 31
    s_lshl_b32 s{S_RT2}, s{S_T0}, 2
    s_add_u32 s{S_RT2}, s{S_RT2}, s{S_T2}
    s_mov_b32 s{S_CT2}, s{S_T3}
    s_lshl_b32 s{S_T4}, s{S_T2}, 1
    s_add_u32 s{S_T4}, s{S_T4}, s{S_T3}
    s_cmp_ge_u32 s{S_T4}, 7
    s_cselect_b32 s{S_T5}, 7, 0
    s_sub_u32 s{S_T5}, s{S_T4}, s{S_T5}
    """)
    VXE, VXO, VWO = 12, 13, 14
    a(f"""
    s_movk_i32 s{S_T2}, 896
    v_and_b32 v2, 7, v0
    v_lshrrev_b32 v3, 3, v0
    s_lshl_b32 s{S_T0}, s{S_RBK}, 6
    v_add_u32 v4, s{S_T0}, v3
    v_mul_lo_u32 v6, v4, s{S_T2}
    v_lshl_add_u32 v6, v2, 4, v6
    v_lshrrev_b32 v2, 3, v1
    s_lshl_b32 s{S_T0}, s{S_WAVE}, 4
    v_add_u32 v2, s{S_T0}, v2
    v_mul_lo_u32 v2, v2, s{S_T2}
    v_and_b32 v3, 7, v1
    v_lshrrev_b32 v4, 4, v1
    v_xor_b32 v3, v3, v4
    v_lshl_add_u32 v{VXE}, v3, 4, v2
    v_xor_b32 v3, 4, v3
    v_lshl_add_u32 v{VXO}, v3, 4, v2
    v_add_u32 v{VXO}, {8*896}, v{VXO}
    s_lshl_b32 s{S_T0}, s{S_WAVE}, 3
    v_add_u32 v2, s{S_T0}, v4
    s_movk_i32 s{S_T2}, 3584
    v_mul_lo_u32 v2, v2, s{S_T2}
    v_and_b32 v3, 15, v1
    v_lshlrev_b32 v5, 2, v4
    v_xor_b32 v3, v3, v5
    v_lshl_add_u32 v{VWO}, v3, 4, v2
    s_lshl_b32 s{S_M0}, s{S_WAVE}, 11
    s_lshl_b32 s{S_T1}, s{S_CG}, 7
    s_lshl_b32 s{S_T3}, s{S_WAVE}, 10
    s_add_u32 m0, s{S_T3}, {KT + 1024}
    v_mov_b32 v10, {OOB}
    s_waitcnt lgkmcnt(0)
    """)
    W2R = 144
    VK, VV, VW, T = 64, 80, 84, 100
    VB = 128
    VGX, VGW, GT = 100, 108, 116
    VW2G, VW2A, VL16 = 140, 141, 143
    ACC1 = 32
    FR = 64
    srd(SRD_K, "k"); srd(SRD_V, "v")
    a(f"""
    buffer_load_dwordx4 v6, {S(SRD_K)}, s{S_T1} offen{NT} lds
    buffer_load_dwordx4 {vr(VV,4)}, v6, {S(SRD_V)}, s{S_T1} offen{NT}
    """)
    vm.issue("kv", 2)
    srd(SRD_SH, "sh"); srd(SRD_B1, "b1"); srd(SRD_GW, "gw")

    def small_loads():
        l_skip = a.newlabel("L_sm")
        a(f"""
        s_cmp_ge_u32 s{S_WAVE}, 4
        s_cbranch_scc1 {l_skip}
        v_lshlrev_b32 v2, 4, v1
        """)
        l1 = a.newlabel("L_sm1"); l2 = a.newlabel("L_sm2"); l3 = a.newlabel("L_sm3")
        a(f"""
        s_cmp_eq_u32 s{S_WAVE}, 1
        s_cbranch_scc1 {l1}
        s_cmp_eq_u32 s{S_WAVE}, 2
        s_cbranch_scc1 {l2}
        s_cmp_eq_u32 s{S_WAVE}, 3
        s_cbranch_scc1 {l3}
        v_lshrrev_b32 v3, 3, v1
        s_lshl_b32 s{S_T0}, s{S_RBK}, 6
        s_sub_u32 s{S_T0}, s{S_T0}, 8
        v_add_u32 v3, s{S_T0}, v3
        s_movk_i32 s{S_T2}, 896
        v_mul_lo_u32 v4, v3, s{S_T2}
        v_and_b32 v5, 7, v1
        v_cmp_le_i32 vcc, 0, v3
        v_lshl_add_u32 v4, v5, 4, v4
        s_lshl_b32 s{S_T1}, s{S_CG}, 7
        s_mov_b32 m0, {KT}
        v_cndmask_b32 v4, v10, v4, vcc
        buffer_load_dwordx4 v4, {S(SRD_K)}, s{S_T1} offen lds
        s_branch {l_skip}
        """)
        a.label(l1)
        a(f"""
        s_lshl_b32 s{S_T1}, s{S_CG}, 9
        s_mov_b32 m0, {LSM}
        s_nop 0
        buffer_load_dwordx4 v2, {S(SRD_SH)}, s{S_T1} offen lds
        s_branch {l_skip}
        """)
        a.label(l2)
        a(f"""
        s_lshl_b32 s{S_T1}, s{S_CB}, 8
        s_mov_b32 m0, {LSM+1024}
        s_nop 0
        buffer_load_dwordx4 v2, {S(SRD_B1)}, s{S_T1} offen lds
        s_branch {l_skip}
        """)
        a.label(l3)
        a(f"""
        s_mov_b32 m0, {LSM+2048}
        s_nop 0
        buffer_load_dwordx4 v2, {S(SRD_GW)}, 0 offen lds
        """)
        a.label(l_skip)

    def issue_chunk(t):
        st = STG[t % 3]
        tag = f"c{t}"
        a(f"""
        s_lshl_b32 s{S_T0}, s{S_KC}, 7
        s_add_u32 s{S_T0}, s{S_T0}, s{S_SOX}
        s_add_u32 m0, s{S_M0}, {st}
        s_mul_i32 s{S_T1}, s{S_KC}, {64*3584}
        buffer_load_dwordx4 v{VXE}, {S(SRD_Q)}, s{S_T0} offen lds
        s_add_u32 m0, s{S_M0}, {st+1024}
        s_add_u32 s{S_T1}, s{S_T1}, s{S_SOW}
        buffer_load_dwordx4 v{VXO}, {S(SRD_Q)}, s{S_T0} offen lds
        s_add_u32 m0, s{S_M0}, {st+16384}
        s_add_u32 s{S_T0}, s{S_T1}, {4*3584}
        buffer_load_dwordx4 v{VWO}, {S(SRD_W1)}, s{S_T1} offen lds
        s_add_u32 m0, s{S_M0}, {st+16384+1024}
        s_add_u32 s{S_KC}, s{S_KC}, 1
        buffer_load_dwordx4 v{VWO}, {S(SRD_W1)}, s{S_T0} offen lds
        s_cmp_eq_u32 s{S_KC}, 7
        s_cselect_b32 s{S_KC}, 0, s{S_KC}
        """)
        vm.issue(tag, 4)

    small_loads()
    srd(SRD_Q, "q"); srd(SRD_W1, "w1")
    a(f"""
    s_mul_i32 s{S_SOX}, s{S_RB}, {128*896}
    s_lshl_b32 s{S_SOW}, s{S_CB}, 8
    s_mov_b32 s{S_KC}, {"s%d" % S_T5 if P["rot"] else 0}
    s_lshl_b32 s{S_ROT2}, s{S_T5}, 1
    """)
    issue_chunk(0)
    a(f"""
    s_lshl_b32 s{S_T0}, s2, 2
    s_load_dword s{S_D}, s[{PTR['sd']}:{PTR['sd']+1}], s{S_T0}
    """)
    srd(SRD_WS, "ws"); srd(SRD_SK, "sk"); srd(SRD_W2, "w2"); srd(SRD_OUT, "out"); srd(SRD_DBG, "dbg"); srd(SRD_QG, "q")
    a(f"""
    s_cmp_lt_u32 s{S_CB}, 8
    s_cselect_b32 s{SRD_QG+2}, s{SRD_QG+2}, 0
    s_mov_b32 s{S_SPIN}, 20000
    s_waitcnt lgkmcnt(0)
    """)
    if stamps:
        a(f"""
        v_mov_b32 v{VST}, 0
        s_memrealtime s[{S_TM}:{S_TM+1}]
        s_waitcnt lgkmcnt(0)
        v_writelane_b32 v{VST}, s{S_TM}, 31
        """)
    stamp()
    a(f"""
    s_or_b32 s{S_T0}, s2, s{S_WAVE}
    s_cmp_lg_u32 s{S_T0}, 0
    s_cbranch_scc1 L_nononce
    s_memrealtime s[{S_NON}:{S_NON+1}]
    s_waitcnt lgkmcnt(0)
    s_or_b32 s{S_NON}, s{S_NON}, 1
    v_mov_b32 v2, s{S_NON}
    v_mov_b32 v3, s{S_NON+1}
    v_lshlrev_b32 v4, 8, v1
    buffer_store_dwordx2 v[2:3], v4, {S(SRD_DBG)}, 0 offen sc1
    """)
    a.label("L_nononce")
    if P["c1pos"] == 0:
        issue_chunk(1)

    VBA = 16
    VBB = 24
    VAA = 20
    VAB = 28
    a(f"""
    s_lshr_b32 s{S_T0}, s{S_WAVE}, 1
    s_lshl_b32 s{S_T0}, s{S_T0}, 5
    v_and_b32 v2, 31, v1
    v_add_u32 v2, s{S_T0}, v2
    v_lshrrev_b32 v3, 5, v1
    v_bfe_u32 v4, v2, 1, 3
    v_xor_b32 v3, v3, v4
    v_lshlrev_b32 v3, 4, v3
    v_lshl_add_u32 v{VBA}, v2, 7, v3
    v_xor_b32 v{VBA+1}, 32, v{VBA}
    v_xor_b32 v{VBA+2}, 64, v{VBA}
    v_xor_b32 v{VBA+3}, 0x60, v{VBA}
    v_add_u32 v{VBB}, 0x10000, v{VBA}
    v_add_u32 v{VBB+1}, 0x10000, v{VBA+1}
    v_add_u32 v{VBB+2}, 0x10000, v{VBA+2}
    v_add_u32 v{VBB+3}, 0x10000, v{VBA+3}
    v_bfe_u32 v2, v1, 4, 1
    v_lshrrev_b32 v3, 5, v1
    v_bfe_u32 v4, v1, 2, 2
    v_and_b32 v5, 3, v1
    v_lshl_add_u32 v6, v3, 3, v4
    v_lshlrev_b32 v6, 8, v6
    s_and_b32 s{S_T0}, s{S_WAVE}, 1
    s_lshl_b32 s{S_T0}, s{S_T0}, 3
    v_lshl_add_u32 v7, v2, 1, s{S_T0}
    v_lshrrev_b32 v8, 1, v5
    v_add_u32 v7, v7, v8
    v_lshlrev_b32 v8, 2, v4
    v_xor_b32 v7, v7, v8
    v_lshl_add_u32 v6, v7, 4, v6
    v_and_b32 v5, 1, v5
    v_lshl_add_u32 v{VAA}, v5, 3, v6
    v_xor_b32 v{VAA+1}, 64, v{VAA}
    v_add_u32 v{VAB}, 0x10000, v{VAA}
    v_add_u32 v{VAB+1}, 0x10000, v{VAA+1}
    """)
    a(f"""
    v_lshrrev_b32 v2, 3, v1
    v_mul_u32_u24 v2, 896, v2
    v_bfe_u32 v3, v1, 4, 1
    v_and_b32 v4, 7, v1
    v_lshlrev_b32 v5, 2, v3
    v_xor_b32 v4, v4, v5
    v_lshl_add_u32 v{VW2G}, v4, 4, v2
    s_mul_i32 s{S_W2M}, s{S_WAVE}, 6144
    s_add_u32 s{S_W2M}, s{S_W2M}, {W2S}
    v_lshrrev_b32 v2, 5, v1
    v_bfe_u32 v4, v1, 2, 2
    v_lshl_add_u32 v2, v2, 2, v4
    v_lshlrev_b32 v2, 7, v2
    v_bfe_u32 v4, v1, 3, 1
    v_lshl_add_u32 v2, v4, 6, v2
    v_lshl_add_u32 v2, v3, 5, v2
    v_and_b32 v4, 3, v1
    v_lshl_add_u32 v2, v4, 3, v2
    v_add_u32 v{VW2A}, s{S_W2M}, v2
    v_xor_b32 v{VW2A+1}, 64, v{VW2A}
    v_lshlrev_b32 v{VL16}, 4, v1
    s_mul_i32 s{S_WB}, s{S_WAVE}, {14*16*896}
    s_lshl_b32 s{S_T0}, s{S_CT2}, 7
    s_add_u32 s{S_WB}, s{S_WB}, s{S_T0}
    s_mov_b32 s{S_W2K}, s{S_ROT2}
    """)

    def w2_issue(j):
        sl = 2048 * (j % 3)
        if j >= 3:
            lg.wait(f"w2r{j-3}")
        a(f"""
        s_mul_i32 s{S_T0}, s{S_W2K}, {16*896}
        s_add_u32 m0, s{S_W2M}, {sl}
        s_add_u32 s{S_T0}, s{S_T0}, s{S_WB}
        s_add_u32 s{S_W2K}, s{S_W2K}, 1
        buffer_load_dwordx4 v{VW2G}, {S(SRD_W2)}, s{S_T0} offen lds
        s_add_u32 m0, s{S_W2M}, {sl+1024}
        s_add_u32 s{S_T0}, s{S_T0}, {8*896}
        buffer_load_dwordx4 v{VW2G}, {S(SRD_W2)}, s{S_T0} offen lds
        s_cmp_eq_u32 s{S_W2K}, 14
        s_cselect_b32 s{S_W2K}, 0, s{S_W2K}
        """)
        vm.issue(f"w2_{j}", 2)

    def w2_read(j):
        sl = 2048 * (j % 3)
        vm.wait(f"w2_{j}")
        if P["wst"]:
            stamp()
        for dt in range(2):
            for u in range(2):
                a(f"ds_read_b64_tr_b16 {vr(W2R+8*j+4*dt+2*u,2)}, v{VW2A+dt} offset:{sl+1024*u}")
        lg.issue(f"w2r{j}", 4)

    W2I = [int(x) for x in P["w2i"].split(",")]
    W2RD = [int(x) for x in P["w2r"].split(",")]
    assert len(W2I) == 14 and len(W2RD) == 14
    for j in range(14):
        assert W2RD[j] > W2I[j] and (j < 3 or W2I[j] > W2RD[j-3] or W2I[j] == W2RD[j-3])
    def w2_step(g):
        for j in range(14):
            if W2RD[j] == g:
                w2_read(j)
        for j in range(14):
            if W2I[j] == g:
                w2_issue(j)

    a(f"""
    v_lshlrev_b32 v2, 4, v0
    v_add_u32 v2, {KT + 1024 - 384}, v2
    v_and_b32 v3, 7, v0
    v_lshlrev_b32 v3, 6, v3
    v_add_u32 v3, {LSM}, v3
    s_mov_b32 s{S_R0}, 0x05040100
    s_mov_b32 s{S_R1}, 0x07060302
    """)
    vm.wait("kv")
    a("s_barrier")
    stamp()
    for j in range(4):
        a(f"ds_read_b128 {vr(VK+4*j,4)}, v2 offset:{384-128*j}")
    for j in range(4):
        a(f"ds_read_b128 {vr(VW+4*j,4)}, v3 offset:{16*j}")
    lg.issue("kvr", 8)
    if P["c1pos"] == 1:
        issue_chunk(1)
    a(f"""
    v_lshrrev_b32 v2, 3, v0
    v_sub_u32 v2, 63, v2
    v_and_b32 v3, 7, v0
    v_lshlrev_b32 v3, 4, v3
    v_lshl_add_u32 v2, v2, 7, v3
    v_add_u32 v2, {LT}, v2
    """)
    lg.wait("kvr")
    for d in range(4):
        t = T + 8 * (d & 1)
        c0, c1 = 2*d, 2*d+1
        a(f"""
        v_perm_b32 v{t}, v{VK+4+d}, v{VK+d}, s{S_R0}
        v_perm_b32 v{t+1}, v{VK+4+d}, v{VK+d}, s{S_R1}
        v_perm_b32 v{t+2}, v{VK+12+d}, v{VK+8+d}, s{S_R0}
        v_perm_b32 v{t+3}, v{VK+12+d}, v{VK+8+d}, s{S_R1}
        v_dot2_f32_bf16 v{t+4}, v{t}, v{VW+2*c0}, 0
        v_dot2_f32_bf16 v{t+5}, v{t+1}, v{VW+2*c1}, 0
        v_lshlrev_b32 v{t+6}, 16, v{VV+d}
        v_and_b32 v{t+7}, 0xffff0000, v{VV+d}
        v_dot2_f32_bf16 v{t+4}, v{t+2}, v{VW+2*c0+1}, v{t+4}
        v_dot2_f32_bf16 v{t+5}, v{t+3}, v{VW+2*c1+1}, v{t+5}
        s_nop 2
        v_mul_f32 v{t+4}, v{t+4}, v{t+6}
        v_mul_f32 v{t+5}, v{t+5}, v{t+7}
        v_cvt_pk_bf16_f32 v{T+20+d}, v{t+4}, v{t+5}
        """)
    a(f"ds_write_b128 v2, {vr(T+20,4)}")
    lg.issue("tw")
    a(f"""
    s_lshr_b32 s{S_T0}, s{S_WAVE}, 2
    s_lshl_b32 s{S_T0}, s{S_T0}, 2
    v_lshrrev_b32 v2, 4, v1
    v_add_u32 v2, s{S_T0}, v2
    v_bfe_u32 v3, v1, 2, 2
    v_lshl_add_u32 v3, v2, 3, v3
    v_lshlrev_b32 v3, 7, v3
    v_and_b32 v4, 3, v1
    s_and_b32 s{S_T1}, s{S_WAVE}, 3
    s_lshl_b32 s{S_T2}, s{S_T1}, 5
    s_add_u32 s{S_T2}, s{S_T2}, {LT}
    v_lshl_add_u32 v4, v4, 3, s{S_T2}
    v_add_u32 v3, v3, v4
    s_lshl_b32 s{S_T2}, s{S_CG}, 6
    s_lshl_b32 s{S_T1}, s{S_T1}, 4
    s_add_u32 s{S_T2}, s{S_T2}, s{S_T1}
    v_and_b32 v4, 15, v1
    v_add_u32 v4, s{S_T2}, v4
    v_lshlrev_b32 v4, 12, v4
    v_lshl_add_u32 v11, v2, 4, v4
    s_lshl_b32 s{S_T4}, s{S_RBK}, 7
    s_sub_u32 s{S_T4}, {WS_KVT + 1984*2}, s{S_T4}
    """)
    lg.wait_all()
    a("s_barrier")
    a(f"""
    ds_read_b64_tr_b16 {vr(T+24,2)}, v3
    ds_read_b64_tr_b16 {vr(T+26,2)}, v3 offset:512
    """)
    lg.issue("kvtr", 2)
    a(f"""
    v_mov_b32 v4, 0
    v_mov_b32 v5, 0
    v_mov_b32 v6, 0
    v_mov_b32 v7, 0
    v_min_u32 v2, 29, v1
    v_lshlrev_b32 v2, 4, v2
    v_add_u32 v2, {KB}, v2
    ds_write_b128 v2, v[4:7]
    ds_write_b128 v2, v[4:7] offset:4608
    s_and_b32 s{S_T0}, s{S_WAVE}, 1
    s_lshl_b32 s{S_T0}, s{S_T0}, 7
    s_add_u32 s{S_T0}, s{S_T0}, {LSM+1024}
    v_lshrrev_b32 v2, 5, v1
    v_lshl_add_u32 v2, v2, 3, s{S_T0}
    """)
    lg.issue("z", 2)
    for i in range(6):
        a(f"ds_read_b64 {vr(VB+2*i,2)}, v2 offset:{16*i}")
    lg.issue("b", 6)
    lg.wait("kvtr")
    a(f"buffer_store_dwordx4 {vr(T+24,4)}, v11, {S(SRD_WS)}, s{S_T4} offen sc1")
    vm.issue("pst")
    for i in range(6, 8):
        a(f"ds_read_b64 {vr(T+2*i-12,2)}, v2 offset:{16*i}")
    lg.issue("b", 2)
    VNON = 30
    a(f"""
    v_mov_b32 v9, 0
    buffer_load_dwordx2 v[{VNON}:{VNON+1}], v9, {S(SRD_DBG)}, 0 offen sc1
    """)
    vm.issue("non")
    if P["c1pos"] == 2:
        issue_chunk(1)
    issue_chunk(2)
    stamp()
    lg.wait("b")
    for ft in range(2):
        for g in range(4):
            for jj in range(2):
                i = 4*ft+g
                src = (VB + 2*i + jj) if i < 6 else (T + 2*i - 12 + jj)
                a(f"v_lshlrev_b32 v{ACC1+16*ft+4*g+2*jj}, 16, v{src}")
                a(f"v_and_b32 v{ACC1+16*ft+4*g+2*jj+1}, 0xffff0000, v{src}")

    side = {n: [] for n in range(28)}
    prebar = {n: [] for n in range(28)}
    VGROW = 15
    def gate_loads():
        a(f"""
        v_lshrrev_b32 v2, 5, v1
        s_lshl_b32 s{S_T0}, s{S_RB}, 7
        s_lshr_b32 s{S_T1}, s{S_WAVE}, 1
        s_lshl_b32 s{S_T1}, s{S_T1}, 5
        s_add_u32 s{S_T0}, s{S_T0}, s{S_T1}
        s_lshl_b32 s{S_T1}, s{S_CB}, 2
        s_add_u32 s{S_T0}, s{S_T0}, s{S_T1}
        s_and_b32 s{S_T1}, s{S_WAVE}, 1
        s_lshl_b32 s{S_T1}, s{S_T1}, 1
        s_add_u32 s{S_T0}, s{S_T0}, s{S_T1}
        v_add_u32 v{VGROW}, s{S_T0}, v2
        v_mul_u32_u24 v2, 896, v{VGROW}
        v_and_b32 v3, 31, v1
        v_lshlrev_b32 v4, 4, v3
        v_cmp_gt_u32 vcc, 28, v3
        v_add_u32 v2, v2, v4
        v_min_u32 v3, 27, v3
        v_cndmask_b32 v2, v10, v2, vcc
        buffer_load_dwordx4 {vr(VGX,4)}, v2, {S(SRD_QG)}, 0 offen
        buffer_load_dwordx4 {vr(VGX+4,4)}, v2, {S(SRD_QG)}, 0 offen offset:448
        v_lshlrev_b32 v3, 4, v3
        v_add_u32 v3, {LSM+2048}, v3
        ds_read_b128 {vr(VGW,4)}, v3
        ds_read_b128 {vr(VGW+4,4)}, v3 offset:448
        """)
        vm.issue("g", 2)
        lg.issue("gwr", 2)

    def gate_dot():
        vm.wait("g")
        lg.wait("gwr")
        for d in range(4):
            a(f"v_dot2_f32_bf16 v{GT+d}, v{VGX+d}, v{VGW+d}, 0")
        for d in range(4):
            a(f"v_dot2_f32_bf16 v{GT+d}, v{VGX+4+d}, v{VGW+4+d}, v{GT+d}")

    def gate_red1():
        a(f"""
        v_add_f32 v{GT}, v{GT}, v{GT+1}
        v_add_f32 v{GT+2}, v{GT+2}, v{GT+3}
        v_and_b32 v2, 31, v1
        v_add_f32 v{GT}, v{GT}, v{GT+2}
        v_lshlrev_b32 v3, 2, v{VGROW}
        v_add_u32 v3, {WS_G}, v3
        v_add_f32_dpp v{GT}, v{GT}, v{GT} quad_perm:[1,0,3,2] row_mask:0xf bank_mask:0xf
        v_cmp_eq_u32 vcc, 0, v2
        s_cmp_lt_u32 s{S_CB}, 8
        v_add_f32_dpp v{GT}, v{GT}, v{GT} quad_perm:[2,3,0,1] row_mask:0xf bank_mask:0xf
        s_cselect_b64 vcc, vcc, 0
        v_cndmask_b32 v{VGROW}, v10, v3, vcc
        v_add_f32_dpp v{GT}, v{GT}, v{GT} row_half_mirror row_mask:0xf bank_mask:0xf
        """)

    def gate_red2():
        a(f"""
        v_add_f32_dpp v{GT}, v{GT}, v{GT} row_mirror row_mask:0xf bank_mask:0xf
        v_mov_b32 v{GT+1}, v{GT}
        s_nop 1
        v_permlane16_swap_b32 v{GT}, v{GT+1}
        s_nop 1
        v_add_f32 v{GT}, v{GT}, v{GT+1}
        v_cvt_pk_bf16_f32 v{GT}, v{GT}, v{GT}
        v_lshlrev_b32 v{GT}, 16, v{GT}
        v_mul_f32 v{GT}, 0xbfb8aa3b, v{GT}
        v_exp_f32 v{GT}, v{GT}
        """)

    def gate_fin():
        a(f"""
        v_add_f32 v{GT}, 1.0, v{GT}
        v_rcp_f32 v{GT}, v{GT}
        s_nop 0
        v_cvt_pk_bf16_f32 v{GT}, v{GT}, v{GT}
        v_lshlrev_b32 v{GT}, 16, v{GT}
        buffer_store_dword v{GT}, v{VGROW}, {S(SRD_WS)}, 0 offen sc1
        """)
        vm.issue("gst")

    def nonce_check():
        vm.wait("non")
        l_ok = a.newlabel("L_nok")
        l_re = a.newlabel("L_nre")
        a(f"""
        v_readfirstlane_b32 s{S_NON}, v{VNON}
        v_readfirstlane_b32 s{S_NON+1}, v{VNON+1}
        s_cmp_lg_u32 s{S_NON}, 0
        s_cbranch_scc1 {l_ok}
        """)
        a.label(l_re)
        a(f"""
        s_cmp_eq_u32 s{S_SPIN}, 0
        s_cbranch_scc1 {l_ok}
        s_sub_u32 s{S_SPIN}, s{S_SPIN}, 1
        s_sleep {P["sleep"]}
        buffer_load_dwordx2 v[{VNON}:{VNON+1}], v9, {S(SRD_DBG)}, 0 offen sc1
        s_waitcnt vmcnt(0)
        v_readfirstlane_b32 s{S_NON}, v{VNON}
        v_readfirstlane_b32 s{S_NON+1}, v{VNON+1}
        s_cmp_eq_u32 s{S_NON}, 0
        s_cbranch_scc1 {l_re}
        """)
        a.label(l_ok)

    FSH = P["fsh"]
    def flag_store(soff_expr_lines, sreg, tid="v1"):
        a(soff_expr_lines)
        a(f"""
        v_mov_b32 v2, s{S_NON}
        v_mov_b32 v3, s{S_NON+1}
        v_cmp_eq_u32 vcc, 0, {tid}
        v_mov_b32 v4, {OOB}
        s_nop 0
        v_cndmask_b32 v4, v4, 0, vcc
        buffer_store_dwordx2 v[2:3], v4, {S(SRD_WS)}, s{sreg} offen sc1
        """)
        vm.issue("flag")

    def prep_flag():
        flag_store(f"""
        s_lshl_b32 s{S_T0}, s2, {FSH}
        s_add_u32 s{S_T0}, s{S_T0}, {FP}
        """, S_T0, "v0")

    def kbuf_dma():
        a(f"""
        s_lshr_b32 s{S_T1}, s{S_WAVE}, 2
        s_and_b32 s{S_T2}, s{S_WAVE}, 3
        s_mul_i32 s{S_T3}, s{S_T1}, 4608
        s_lshl_b32 s{S_T2}, s{S_T2}, 10
        s_add_u32 s{S_T3}, s{S_T3}, s{S_T2}
        s_add_u32 m0, s{S_T3}, {KB + 480}
        s_lshl_b32 s{S_T0}, s2, 13
        s_lshl_b32 s{S_T3}, s{S_WAVE}, 10
        s_add_u32 s{S_T0}, s{S_T0}, s{S_T3}
        buffer_load_dwordx4 v{VL16}, {S(SRD_SK)}, s{S_T0} offen{NT} lds
        """)
        vm.issue("K")

    VPA = 22
    def prep_poll_issue():
        a(f"""
        s_lshl_b32 s{S_T0}, s{S_WAVE}, 2
        s_lshl_b32 s{S_T1}, s{S_CG}, 5
        s_add_u32 s{S_T0}, s{S_T0}, s{S_T1}
        v_and_b32 v2, 3, v1
        v_add_u32 v2, s{S_T0}, v2
        s_mov_b32 s{S_T5}, {FP}
        v_lshlrev_b32 v{VPA}, {FSH}, v2
        buffer_load_dwordx2 v[{VNON}:{VNON+1}], v{VPA}, {S(SRD_WS)}, s{S_T5} offen sc1
        """)
        vm.issue("poll")

    def prep_poll_check():
        vm.wait("poll")
        a(f"s_mov_b32 s{S_T5}, {FP}")
        poll_check(VNON, VPA, S_T5)

    W = 100
    def kvt_loads():
        a(f"""
        v_lshlrev_b32 v3, 4, v0
        v_add_u32 v4, 16, v3
        v_and_b32 v5, 255, v0
        v_cmp_ne_u32 vcc, 255, v5
        s_lshl_b32 s{S_T0}, s2, 13
        s_add_u32 s{S_T0}, s{S_T0}, {WS_KVT}
        v_cndmask_b32 v4, v10, v4, vcc
        buffer_load_dwordx4 {vr(W,4)}, v3, {S(SRD_WS)}, s{S_T0} offen sc1
        buffer_load_dwordx4 {vr(W+4,4)}, v4, {S(SRD_WS)}, s{S_T0} offen sc1
        """)
        vm.issue("U", 2)

    Bq, Cq, Dq = 108, 114, 120
    VUW = 15
    def ubuf_prep():
        a(f"""
        v_lshrrev_b32 v6, 8, v0
        v_mul_u32_u24 v6, {8*UP}, v6
        v_and_b32 v5, 255, v0
        v_lshl_add_u32 v{VUW}, v5, 4, v6
        v_mov_b32 v4, 0
        v_mov_b32 v5, 0
        v_mov_b32 v6, 0
        v_mov_b32 v7, 0
        v_and_b32 v2, 15, v1
        v_mul_u32_u24 v2, {UP}, v2
        ds_write_b128 v2, v[4:7] offset:{UB + 4096}
        """)
        lg.issue("uw")

    def ubuf_write(p):
        e = 7 - p
        aa = e >> 1
        if e & 1:
            src = (Cq + aa) if aa % 2 == 0 else (Dq + aa - 1)
        else:
            src = (W + aa) if aa % 2 == 0 else (Bq + aa - 1)
        a(f"ds_write_b128 v{VUW}, {vr(src,4)} offset:{UB + p*UP}")
        lg.issue("uw")

    def ubuf_a():
        vm.wait("U")
        ubuf_write(7); ubuf_write(3)
        for i in range(6):
            a(f"v_mov_b32 v{Bq+i}, v{W+1+i}")
        ubuf_write(5); ubuf_write(1)
    def ubuf_b():
        for i in range(6):
            a(f"v_alignbyte_b32 v{Cq+i}, v{W+i+1}, v{W+i}, 2")
        ubuf_write(6); ubuf_write(2)
        for i in range(6):
            a(f"v_alignbyte_b32 v{Dq+i}, v{W+i+2}, v{W+i+1}, 2")
        ubuf_write(4); ubuf_write(0)

    VA, VBk = 8, 9
    def conv_addr():
        a(f"""
        s_lshr_b32 s{S_T1}, s{S_WAVE}, 2
        s_bfe_u32 s{S_T2}, s{S_WAVE}, 0x10001
        s_sub_u32 s{S_T2}, 1, s{S_T2}
        s_lshl_b32 s{S_T2}, s{S_T2}, 8
        s_mul_i32 s{S_T3}, s{S_T1}, {8*UP}
        s_add_u32 s{S_T3}, s{S_T3}, s{S_T2}
        s_add_u32 s{S_T3}, s{S_T3}, {UB + 16}
        v_and_b32 v2, 7, v1
        v_mul_u32_u24 v2, {UP}, v2
        v_bfe_u32 v3, v1, 3, 1
        v_lshrrev_b32 v4, 4, v1
        v_sub_u32 v3, v4, v3
        v_lshlrev_b32 v3, 4, v3
        v_add3_u32 v{VA}, v2, v3, s{S_T3}
        s_mul_i32 s{S_T3}, s{S_T1}, 4608
        s_add_u32 s{S_T3}, s{S_T3}, s{S_T2}
        s_add_u32 s{S_T3}, s{S_T3}, {KB}
        v_and_b32 v2, 15, v1
        v_lshlrev_b32 v2, 5, v2
        v_lshl_add_u32 v2, v4, 4, v2
        v_add_u32 v{VBk}, s{S_T3}, v2
        """)

    def act_base():
        a(f"""
        s_lshr_b32 s{S_T0}, s{S_WAVE}, 1
        s_lshl_b32 s{S_T1}, s{S_RB}, 2
        s_add_u32 s{S_T0}, s{S_T0}, s{S_T1}
        s_mul_i32 s{S_T0}, s{S_T0}, 112
        s_lshl_b32 s{S_T1}, s{S_CB}, 3
        s_add_u32 s{S_T0}, s{S_T0}, s{S_T1}
        s_and_b32 s{S_T1}, s{S_WAVE}, 1
        s_lshl_b32 s{S_T1}, s{S_T1}, 2
        s_add_u32 s{S_T0}, s{S_T0}, s{S_T1}
        s_lshl_b32 s{S_AB}, s{S_T0}, 10
        s_mov_b32 s{S_LOG}, 0x3fb8aa3b
        """)

    pf = P["pflag"]
    if pf >= 0:
        prebar[pf] += [lambda: vm.wait("pst"), nonce_check]
        side[pf] += [prep_flag]
    side[P["k_at"]] += [kbuf_dma]
    side[P["g_ld"]] += [gate_loads]
    gc = P["g_cmp"]
    side[gc] += [gate_dot]
    side[gc+1] += [gate_red1]
    side[gc+2] += [gate_red2]
    side[P["g_fin"]] += [gate_fin]
    assert gc + 2 < P["g_fin"] < 22 and gc < P["poll_bar"]
    side[P["poll_at"]] += [prep_poll_issue]
    prebar[P["poll_bar"]] += [prep_poll_check]
    side[P["poll_bar"]] += [kvt_loads]
    side[19] += [act_base]
    side[20] += [conv_addr]
    side[22] += [ubuf_prep]
    ub = P["ub_at"]
    assert ub >= 22
    post = []
    for k, f in ((ub, ubuf_a), (ub + 1, ubuf_b)):
        if k < 28:
            side[k].append(f)
        else:
            post.append(f)

    def reads(n):
        t, ks = n >> 2, n & 3
        base = STG[t % 3]
        win = base >= 65536
        off = base - (65536 if win else 0)
        fb = FR + 12 * (n % 3)
        vb = (VBB if win else VBA) + ks
        va = VAB if win else VAA
        a(f"ds_read_b128 {vr(fb+8,4)}, v{vb} offset:{off}")
        for ft in range(2):
            for part in range(2):
                a(f"ds_read_b64_tr_b16 {vr(fb+4*ft+2*part,2)}, v{va+ft} offset:{off+16384+4096*ks+1024*part}")
        lg.issue(f"r{n}", 5)

    vm.wait("c0")
    if pf < 0:
        vm.wait("pst")
        nonce_check()
    lg.wait_all()
    a("s_barrier")
    stamp()
    reads(0); reads(1)
    if pf < 0:
        prep_flag()
    for n in range(28):
        fb = FR + 12 * (n % 3)
        bar = ((n + 2) & 3) == 0 and n + 2 < 28
        lg.wait(f"r{n}")
        a(f"v_mfma_f32_32x32x16_bf16 {vr(ACC1,16)}, {vr(fb,4)}, {vr(fb+8,4)}, {vr(ACC1,16)}")
        if bar:
            t1 = (n + 2) >> 2
            for f in prebar[n]:
                f()
            lg.wait_all()
            vm.wait(f"c{t1}")
            a("s_barrier")
            if P["gst"]:
                stamp()
        else:
            assert not prebar[n]
        if n + 2 < 28:
            reads(n + 2)
        a(f"v_mfma_f32_32x32x16_bf16 {vr(ACC1+16,16)}, {vr(fb+4,4)}, {vr(fb+8,4)}, {vr(ACC1+16,16)}")
        if bar and t1 + 2 <= 6:
            issue_chunk(t1 + 2)
        for f in side[n]:
            f()
        w2_step(n)
    stamp()

    MT = 24
    mish_ops = []
    def mop(s, kind="v"):
        mish_ops.append((s, kind))
    for grp in range(4):
        hb = ACC1 + 8 * grp
        for half in range(2):
            hs = [hb + 4 * half + e for e in range(4)]
            for e in range(4):
                mop(f"v_mul_f32 v{MT+2*e}, s{S_LOG}, v{hs[e]}")
            for e in range(4):
                mop(f"v_exp_f32 v{MT+2*e}, v{MT+2*e}")
            for e in range(4):
                mop(f"v_fma_f32 v{MT+2*e+1}, v{MT+2*e}, 0.5, 1.0")
            for e in range(4):
                mop(f"v_fma_f32 v{MT+2*e}, v{MT+2*e}, v{MT+2*e+1}, 1.0")
            for e in range(4):
                mop(f"v_rcp_f32 v{MT+2*e}, v{MT+2*e}")
            for e in range(4):
                mop(f"v_fma_f32 v{hs[e]}, -v{hs[e]}, v{MT+2*e}, v{hs[e]}")
        for e2 in range(4):
            mop(f"v_cvt_pk_bf16_f32 v{hb+e2}, v{hb+2*e2}, v{hb+2*e2+1}")
        mop(f"buffer_store_dwordx4 {vr(hb,4)}, v{VL16}, {S(SRD_WS)}, s{S_AB} offen offset:{1024*grp} sc1", "st")

    mi = [0]
    def emit_mish(k):
        for _ in range(k):
            if mi[0] >= len(mish_ops):
                return
            s, kind = mish_ops[mi[0]]
            mi[0] += 1
            a(s)
            if kind == "st":
                vm.issue("act")
    for f in post:
        f()
    a("s_nop 7")
    a("s_nop 7")
    emit_mish(P["mpre"])
    vm.wait("K")
    lg.wait_all()
    a("s_barrier")
    stamp()

    CACC = 124
    POOL = [100 + 4 * i for i in range(6)] + [80 + 4 * i for i in range(5)]
    RSETS = [[0, 1, 6, 7], [2, 3, 4, 5]]
    lab_rs1 = a.newlabel("L_cv_rs1")
    lab_join = a.newlabel("L_cv_join")
    a(f"""
    s_and_b32 s{S_T0}, s{S_WAVE}, 1
    s_cmp_eq_u32 s{S_T0}, 1
    s_cbranch_scc1 {lab_rs1}
    """)
    vm_save = list(vm.ops); lg_save = list(lg.ops); mi_save = mi[0]; nst_save = nst[0]
    MPER = P["mper"]
    FLAG_AT = P["flag_at"]
    for rs in range(2):
        if rs == 1:
            a.label(lab_rs1)
            vm.ops = list(vm_save); lg.ops = list(lg_save); mi[0] = mi_save; nst[0] = nst_save
        rset = RSETS[rs]
        rmax = max(rset)
        seq = []
        for rp in range(4):
            order = range(rmax + 1) if rp % 2 == 0 else range(rmax, -1, -1)
            for b in order:
                for ri, r in enumerate(rset):
                    if r >= b:
                        seq.append((rp, ri, ("A", rp, b), ("B", rp, r - b)))
        last = {}
        firstorder = []
        for i, (rp, ri, fa, fbk) in enumerate(seq):
            for f in (fa, fbk):
                if f not in last:
                    firstorder.append(f)
                last[f] = i
        free = list(POOL)
        loc = {}
        nxt = [0]
        def issue_loads():
            while nxt[0] < len(firstorder) and free:
                f = firstorder[nxt[0]]
                reg = free.pop(0)
                loc[f] = reg
                if f[0] == "A":
                    a(f"ds_read_b128 {vr(reg,4)}, v{VA} offset:{64*(59-8*f[2]-f[1])}")
                else:
                    a(f"ds_read_b128 {vr(reg,4)}, v{VBk} offset:{64*(8*f[2]+3-f[1])}")
                lg.issue(f)
                nxt[0] += 1
        started = set()
        issue_loads()
        for i, (rp, ri, fa, fbk) in enumerate(seq):
            assert fa in loc and fbk in loc, (i, fa, fbk)
            lg.wait(fa); lg.wait(fbk)
            c = vr(CACC + 4 * ri, 4) if ri in started else "0"
            started.add(ri)
            a(f"v_mfma_f32_16x16x32_bf16 {vr(CACC+4*ri,4)}, {vr(loc[fa],4)}, {vr(loc[fbk],4)}, {c}")
            for f in (fa, fbk):
                if last[f] == i and loc[f] not in free:
                    free.append(loc[f])
            issue_loads()
            emit_mish(MPER)
            w2_step(28 + i)
            if i == FLAG_AT:
                assert mi[0] >= len(mish_ops)
                vm.wait("act")
                if P["g2st"]:
                    stamp()
                flag_store(f"""
                s_mul_i32 s{S_T0}, s{S_RB}, 28
                s_lshl_b32 s{S_T1}, s{S_CB}, 1
                s_add_u32 s{S_T0}, s{S_T0}, s{S_T1}
                s_and_b32 s{S_T1}, s{S_WAVE}, 1
                s_add_u32 s{S_T0}, s{S_T0}, s{S_T1}
                s_lshl_b32 s{S_T0}, s{S_T0}, 2
                s_lshr_b32 s{S_T1}, s{S_WAVE}, 1
                s_add_u32 s{S_T0}, s{S_T0}, s{S_T1}
                s_lshl_b32 s{S_T0}, s{S_T0}, {FSH}
                s_add_u32 s{S_T0}, s{S_T0}, {FA}
                """, S_T0)
        for g in range(28 + len(seq), 200):
            w2_step(g)
        a(f"""
        s_bfe_u32 s{S_T2}, s{S_WAVE}, 0x10001
        s_cmp_eq_u32 s{S_T2}, 0
        s_cselect_b32 s{S_R0}, {rset[0]}, {rset[2]}
        s_cselect_b32 s{S_R1}, {rset[1]}, {rset[3]}
        """)
        if rs == 0:
            a(f"s_branch {lab_join}")
            vm_end = list(vm.ops)
        else:
            assert vm_end == vm.ops
    a.label(lab_join)
    lg.ops = ["x"] * 15
    stamp()

    AF = 24
    ACC2 = 80
    a(f"""
    s_mul_i32 s{S_T0}, s{S_WAVE}, 14
    s_add_u32 s{S_T1}, s{S_T0}, 13
    s_lshr_b32 s{S_T0}, s{S_T0}, 2
    s_lshr_b32 s{S_T1}, s{S_T1}, 2
    v_lshrrev_b32 v2, 1, v1
    v_add_u32 v2, s{S_T0}, v2
    v_min_u32 v2, s{S_T1}, v2
    s_lshr_b32 s{S_T2}, s{S_RT2}, 1
    s_mul_i32 s{S_T2}, s{S_T2}, 28
    v_add_u32 v2, s{S_T2}, v2
    s_and_b32 s{S_T2}, s{S_RT2}, 1
    s_lshl_b32 s{S_T2}, s{S_T2}, 1
    v_and_b32 v3, 1, v1
    v_add_u32 v3, s{S_T2}, v3
    v_lshl_add_u32 v2, v2, 2, v3
    v_lshlrev_b32 v{VPA}, {FSH}, v2
    s_mov_b32 s{S_T5}, {FA}
    buffer_load_dwordx2 v[6:7], v{VPA}, {S(SRD_WS)}, s{S_T5} offen sc1
    """)
    vm.issue("poll")
    lab_cs1 = a.newlabel("L_cv_cs1")
    lab_j2 = a.newlabel("L_cv_j2")
    a(f"""
    s_lshl_b32 s{S_T3}, s{S_WAVE}, 11
    v_add_u32 v3, s{S_T3}, v{VL16}
    s_xor_b32 s{S_T3}, s{S_T3}, 0x1000
    v_add_u32 v4, s{S_T3}, v{VL16}
    s_bfe_u32 s{S_T2}, s{S_WAVE}, 0x10001
    s_cmp_eq_u32 s{S_T2}, 0
    s_cbranch_scc0 {lab_cs1}
    ds_write_b128 v3, {vr(CACC+8,4)} offset:{XB}
    ds_write_b128 v3, {vr(CACC+12,4)} offset:{XB+1024}
    s_branch {lab_j2}
    """)
    a.label(lab_cs1)
    a(f"""
    ds_write_b128 v3, {vr(CACC,4)} offset:{XB}
    ds_write_b128 v3, {vr(CACC+4,4)} offset:{XB+1024}
    s_nop 1
    """)
    for i in range(8):
        a(f"v_mov_b32 v{CACC+i}, v{CACC+8+i}")
    a.label(lab_j2)
    TT = 80
    a(f"""
    s_lshr_b32 s{S_T3}, s{S_WAVE}, 2
    s_mul_i32 s{S_T2}, s{S_T3}, {8*UP}
    s_add_u32 s{S_T2}, s{S_T2}, {UB + 7*UP + 4088}
    v_and_b32 v5, 15, v1
    v_lshrrev_b32 v11, 4, v1
    v_lshlrev_b32 v2, 5, v5
    v_lshl_add_u32 v2, v11, 3, v2
    v_sub_u32 v2, s{S_T2}, v2
    s_lshl_b32 s{S_T2}, s{S_R0}, 9
    v_subrev_u32 v12, s{S_T2}, v2
    s_lshl_b32 s{S_T2}, s{S_R1}, 9
    v_subrev_u32 v13, s{S_T2}, v2
    ds_read_b64 v[{TT+8}:{TT+9}], v12
    ds_read_b64 v[{TT+10}:{TT+11}], v13
    s_waitcnt lgkmcnt(0)
    s_barrier
    ds_read_b128 {vr(TT,4)}, v4 offset:{XB}
    ds_read_b128 {vr(TT+4,4)}, v4 offset:{XB+1024}
    """)
    lg.clear()
    lg.issue("xr", 2)
    vm.wait("poll")
    if P["g2st"]:
        stamp()
    poll_check(6, VPA, S_T5)
    if P["g2st"]:
        stamp()
    a(f"""
    s_mul_i32 s{S_AB}, s{S_RT2}, {2*112}
    s_mul_i32 s{S_T0}, s{S_WAVE}, 14
    s_add_u32 s{S_AB}, s{S_AB}, s{S_T0}
    s_lshl_b32 s{S_AB}, s{S_AB}, 10
    s_mov_b32 s{S_KC}, s{S_ROT2}
    """)
    def actload(st, j):
        a(f"""
        s_lshl_b32 s{S_T0}, s{S_KC}, 10
        s_add_u32 s{S_T0}, s{S_T0}, s{S_AB}
        s_add_u32 s{S_KC}, s{S_KC}, 1
        buffer_load_dwordx4 {vr(AF+4*j,4)}, v{VL16}, {S(SRD_WS)}, s{S_T0} offen sc1
        s_cmp_eq_u32 s{S_KC}, 14
        s_cselect_b32 s{S_KC}, 0, s{S_KC}
        """)
        vm.issue(f"a{st}_{j}")
    VL = 21
    a(f"v_mov_b32 v{VL}, v{VL16}")
    VL16 = VL
    for j in range(14):
        actload(0, j)
    a(f"s_add_u32 s{S_AB}, s{S_AB}, {112*1024}")
    stamp()
    a(f"""
    s_lshl_b32 s{S_T2}, s{S_D}, 16
    s_and_b32 s{S_T4}, s{S_D}, 0xffff0000
    s_cmp_eq_u32 s{S_T3}, 0
    s_cselect_b32 s{S_T4}, s{S_T2}, s{S_T4}
    v_mov_b32 v13, s{S_R0}
    v_mov_b32 v14, s{S_R1}
    v_and_b32 v15, 1, v11
    v_cmp_eq_u32 vcc, 0, v15
    v_lshrrev_b32 v15, 1, v11
    v_lshlrev_b32 v7, 5, v5
    v_cndmask_b32 v13, v14, v13, vcc
    v_lshl_add_u32 v7, v15, 4, v7
    v_lshl_add_u32 v7, v13, 9, v7
    s_lshl_b32 s{S_T2}, s2, 1
    s_add_u32 s{S_T2}, s{S_T2}, s{S_T3}
    s_lshl_b32 s{S_T5}, s{S_T2}, 2
    s_lshl_b32 s{S_T2}, s{S_T2}, 12
    s_add_u32 s{S_T2}, s{S_T2}, {WS_Y2T}
    """)
    lg.wait("xr")
    R = TT + 12
    for ri in range(2):
        kvr = TT + 8 + 2 * ri
        a(f"""
        v_and_b32 v{TT+16}, 0xffff0000, v{kvr+1}
        v_lshlrev_b32 v{TT+17}, 16, v{kvr+1}
        v_and_b32 v{TT+18}, 0xffff0000, v{kvr}
        v_lshlrev_b32 v{TT+19}, 16, v{kvr}
        """)
        for j in range(4):
            a(f"v_add_f32 v{CACC+4*ri+j}, v{CACC+4*ri+j}, v{TT+4*ri+j}")
            a(f"v_fmac_f32 v{CACC+4*ri+j}, s{S_T4}, v{TT+16+j}")
        a(f"v_cvt_pk_bf16_f32 v{R+2*ri}, v{CACC+4*ri}, v{CACC+4*ri+1}")
        a(f"v_cvt_pk_bf16_f32 v{R+2*ri+1}, v{CACC+4*ri+2}, v{CACC+4*ri+3}")
    a(f"""
    s_nop 1
    v_permlane16_swap_b32 v{R}, v{R+2}
    v_permlane16_swap_b32 v{R+1}, v{R+3}
    s_nop 1
    v_mov_b32 v16, v{R}
    v_mov_b32 v17, v{R+1}
    v_mov_b32 v18, v{R+2}
    v_mov_b32 v19, v{R+3}
    buffer_store_dwordx4 v[16:19], v7, {S(SRD_WS)}, s{S_T2} offen sc1
    """)
    vm.issue("yst")
    a(f"""
    s_and_b32 s{S_T0}, s{S_WAVE}, 3
    s_add_u32 s{S_T5}, s{S_T5}, s{S_T0}
    s_lshl_b32 s{S_T5}, s{S_T5}, {FSH}
    s_add_u32 s{S_R0}, s{S_T5}, {FY}
    """)
    VQ = 12
    VG = 11
    VO = 10
    VOMG = 20
    a(f"""
    s_lshr_b32 s{S_T0}, s{S_WAVE}, 1
    s_lshl_b32 s{S_T0}, s{S_T0}, 4
    s_lshl_b32 s{S_T1}, s{S_RT2}, 6
    s_add_u32 s{S_T0}, s{S_T0}, s{S_T1}
    v_and_b32 v2, 15, v1
    v_add_u32 v2, s{S_T0}, v2
    s_and_b32 s{S_T0}, s{S_WAVE}, 1
    s_lshl_b32 s{S_T0}, s{S_T0}, 2
    v_lshrrev_b32 v3, 4, v1
    v_add_u32 v{VO}, s{S_T0}, v3
    s_movk_i32 s{S_T2}, 896
    v_mul_lo_u32 v3, v2, s{S_T2}
    v_lshl_add_u32 v3, v{VO}, 4, v3
    s_lshl_b32 s{S_T0}, s{S_CT2}, 7
    v_lshlrev_b32 v{VG}, 2, v2
    buffer_load_dwordx4 {vr(VQ,4)}, v3, {S(SRD_Q)}, s{S_T0} offen
    """)
    vm.issue("q")
    a(f"""
    s_lshl_b32 s{S_T0}, s{S_WAVE}, 3
    s_add_u32 s{S_T0}, s{S_T0}, s{S_T1}
    v_bfe_u32 v2, v1, 3, 1
    v_lshrrev_b32 v3, 4, v1
    v_lshl_add_u32 v2, v2, 2, v3
    v_add_u32 v2, s{S_T0}, v2
    v_lshlrev_b32 v{VOMG}, 2, v2
    s_movk_i32 s{S_T2}, 896
    v_mul_lo_u32 v2, v2, s{S_T2}
    v_and_b32 v3, 7, v1
    v_lshl_add_u32 v2, v3, 3, v2
    s_lshl_b32 s{S_T0}, s{S_CT2}, 7
    v_add_u32 v9, s{S_T0}, v2
    """)
    VOUT = 9
    stamp()

    def mf2(st, dt, j, first):
        ac = ACC2 + 32 * st + 16 * dt
        c = "0" if first else vr(ac, 16)
        a(f"v_mfma_f32_32x32x16_bf16 {vr(ac,16)}, {vr(AF+4*j,4)}, {vr(W2R+8*j+4*dt,4)}, {c}")
    for j in range(14):
        vm.wait(f"a0_{j}")
        if P["g2st"] and j in (0, 4, 9, 13):
            stamp()
        mf2(0, 0, j, j == 0)
        mf2(0, 1, j, j == 0)
        actload(1, j)
        if j == 6:
            vm.wait("yst")
            flag_store("", S_R0)
    stamp()
    a(f"""
    s_lshr_b32 s{S_T0}, s{S_RT2}, 3
    s_lshr_b32 s{S_T1}, 0x2310, 0
    s_lshl_b32 s{S_T0}, s{S_T0}, 2
    s_lshr_b32 s{S_T1}, s{S_T1}, s{S_T0}
    s_and_b32 s{S_T1}, s{S_T1}, 3
    s_lshl_b32 s{S_T0}, s{S_CT2}, 6
    s_lshl_b32 s{S_T2}, s{S_WAVE}, 3
    s_add_u32 s{S_T0}, s{S_T0}, s{S_T2}
    v_lshrrev_b32 v2, 3, v1
    v_add_u32 v2, s{S_T0}, v2
    v_lshl_add_u32 v3, v2, 2, s{S_T1}
    v_lshlrev_b32 v{VPA}, {FSH}, v3
    s_mov_b32 s{S_T5}, {FY}
    buffer_load_dwordx2 v[6:7], v{VPA}, {S(SRD_WS)}, s{S_T5} offen sc1
    v_lshlrev_b32 v2, 12, v2
    v_and_b32 v3, 7, v1
    v_lshl_add_u32 v8, v3, 4, v2
    s_lshl_b32 s{S_T1}, s{S_RT2}, 7
    s_add_u32 s{S_R1}, s{S_T1}, {WS_Y2T}
    s_lshl_b32 s{S_M0}, s{S_WAVE}, 8
    s_mov_b32 s{S_T2}, {WS_G}
    s_barrier
    buffer_load_dword v{VG}, v{VG}, {S(SRD_WS)}, s{S_T2} offen sc1
    buffer_load_dword v{VOMG}, v{VOMG}, {S(SRD_WS)}, s{S_T2} offen sc1
    """)
    vm.issue("poll")
    vm.issue("q", 2)
    pw = []
    def pwrite(reg):
        lo = reg < 32
        if not pw or pw[-1] != lo:
            a(f"s_add_u32 m0, s{S_M0}, {PART + (0 if lo else 63492)}")
            a("s_nop 0")
            pw.append(lo)
        off = reg * 2048 - (0 if lo else 63492)
        a(f"ds_write_addtid_b32 v{ACC2+reg} offset:{off}")
        lg.issue("pw")
    for j in range(14):
        vm.wait(f"a1_{j}")
        if P["g2st"] and j in (0, 4, 9, 13):
            stamp()
        mf2(1, 0, j, j == 0)
        if j >= 1:
            for r in range(3 * (j - 1), min(32, 3 * j)):
                pwrite(r)
        if j == 13:
            pass
    vm.wait("poll")
    poll_check(6, VPA, S_T5)
    if P["g2st"]:
        stamp()
    a(f"buffer_load_dwordx4 v[16:19], v8, {S(SRD_WS)}, s{S_R1} offen sc1")
    vm.issue("y")
    for j in range(14):
        mf2(1, 1, j, j == 0)
        if j >= 2:
            for r in range(32 + 2 * (j - 2), min(48, 32 + 2 * (j - 1))):
                pwrite(r)
    stamp()
    a(f"""
    s_lshl_b32 s{S_T1}, s{S_WAVE}, 10
    s_add_u32 s{S_T1}, s{S_T1}, {YB}
    v_add_u32 v2, s{S_T1}, v{VL16}
    """)
    vm.wait("y")
    a("ds_write_b128 v2, v[16:19]")
    lg.issue("yw")
    a("s_nop 7")
    for r in range(48, 64):
        pwrite(r)
    lg.wait_all()
    a("s_barrier")
    stamp()
    VY = 16
    a(f"""
    v_bfe_u32 v4, v1, 2, 2
    v_lshl_add_u32 v4, v{VO}, 3, v4
    v_lshlrev_b32 v4, 7, v4
    v_and_b32 v5, 3, v1
    v_lshl_add_u32 v4, v5, 3, v4
    s_lshr_b32 s{S_T0}, s{S_WAVE}, 1
    s_lshl_b32 s{S_T0}, s{S_T0}, 5
    s_add_u32 s{S_T0}, s{S_T0}, {YB}
    v_add_u32 v4, s{S_T0}, v4
    ds_read_b64_tr_b16 {vr(VY,2)}, v4
    ds_read_b64_tr_b16 {vr(VY+2,2)}, v4 offset:512
    """)
    lg.issue("ytr", 2)
    RD = 24
    a(f"""
    s_lshr_b32 s{S_T0}, s{S_WAVE}, 2
    s_lshl_b32 s{S_T0}, s{S_T0}, 5
    s_and_b32 s{S_T1}, s{S_WAVE}, 3
    s_lshl_b32 s{S_T1}, s{S_T1}, 2
    s_add_u32 s{S_T0}, s{S_T0}, s{S_T1}
    v_lshrrev_b32 v2, 4, v1
    v_add_u32 v2, s{S_T0}, v2
    v_lshlrev_b32 v2, 11, v2
    v_and_b32 v3, 15, v1
    v_lshl_add_u32 v2, v3, 4, v2
    """)
    for wv in range(8):
        for dt in range(2):
            a(f"ds_read_b128 {vr(RD+8*wv+4*dt,4)}, v2 offset:{PART + dt*32768 + wv*256}")
            lg.issue(f"pr{wv}")
    vm.wait("q")
    a(f"""
    s_lshr_b32 s{S_T0}, s{S_WAVE}, 2
    s_lshl_b32 s{S_T0}, s{S_T0}, 5
    s_bfe_u32 s{S_T1}, s{S_WAVE}, 0x10001
    s_lshl_b32 s{S_T1}, s{S_T1}, 3
    s_add_u32 s{S_T0}, s{S_T0}, s{S_T1}
    s_and_b32 s{S_T1}, s{S_WAVE}, 1
    s_lshl_b32 s{S_T1}, s{S_T1}, 4
    s_add_u32 s{S_T0}, s{S_T0}, s{S_T1}
    v_bfe_u32 v3, v1, 3, 1
    v_lshl_add_u32 v3, v3, 2, s{S_T0}
    v_and_b32 v4, 3, v1
    v_add_u32 v3, v3, v4
    v_lshlrev_b32 v3, 8, v3
    v_bfe_u32 v4, v1, 2, 1
    v_lshl_add_u32 v3, v4, 7, v3
    v_lshrrev_b32 v4, 4, v1
    v_lshl_add_u32 v3, v4, 5, v3
    v_add_u32 v3, {ATERM}, v3
    v_sub_f32 v{VOMG}, 1.0, v{VOMG}
    v_cvt_pk_bf16_f32 v{VOMG}, v{VOMG}, v{VOMG}
    v_lshlrev_b32 v{VOMG}, 16, v{VOMG}
    """)
    lg.wait("ytr")
    AT = 96
    for d in range(4):
        a(f"""
        v_lshlrev_b32 v{AT+2*d}, 16, v{VQ+d}
        v_and_b32 v{AT+2*d+1}, 0xffff0000, v{VQ+d}
        v_lshlrev_b32 v4, 16, v{VY+d}
        v_and_b32 v5, 0xffff0000, v{VY+d}
        v_mul_f32 v{AT+2*d}, v{AT+2*d}, v4
        v_mul_f32 v{AT+2*d+1}, v{AT+2*d+1}, v5
        v_mul_f32 v{AT+2*d}, v{AT+2*d}, v{VG}
        v_mul_f32 v{AT+2*d+1}, v{AT+2*d+1}, v{VG}
        """)
    a(f"""
    ds_write_b128 v3, {vr(AT,4)}
    ds_write_b128 v3, {vr(AT+4,4)} offset:16
    """)
    lg.issue("aw", 2)
    for wv in range(1, 8):
        lg.wait(f"pr{wv}")
        for e in range(0, 8, 2):
            a(f"v_pk_add_f32 {vr(RD+e,2)}, {vr(RD+e,2)}, {vr(RD+8*wv+e,2)}")
    lg.wait_all()
    a(f"""
    s_barrier
    v_lshrrev_b32 v2, 3, v2
    v_and_b32 v2, 0xff00, v2
    v_and_b32 v3, 15, v1
    v_lshl_add_u32 v2, v3, 4, v2
    v_add_u32 v2, {ATERM}, v2
    ds_read_b128 {vr(AT,4)}, v2
    ds_read_b128 {vr(AT+4,4)}, v2 offset:4096
    s_waitcnt lgkmcnt(0)
    """)
    for e in range(8):
        a(f"v_fmac_f32 v{AT+e}, v{VOMG}, v{RD+e}")
    for e in range(4):
        a(f"v_cvt_pk_bf16_f32 v{AT+e}, v{AT+2*e}, v{AT+2*e+1}")
    a(f"""
    buffer_store_dwordx2 {vr(AT,2)}, v{VOUT}, {S(SRD_OUT)}, 0 offen
    buffer_store_dwordx2 {vr(AT+2,2)}, v{VOUT}, {S(SRD_OUT)}, 0 offen offset:64
    """)
    if stamps:
        a("s_waitcnt vmcnt(0)")
        stamp()
        a(f"""
        s_memrealtime s[{S_TM}:{S_TM+1}]
        s_waitcnt lgkmcnt(0)
        v_writelane_b32 v{VST}, s{S_TM}, 30
        """)
        a(f"""
        s_lshl_b32 s{S_T0}, s2, 3
        s_add_u32 s{S_T0}, s{S_T0}, s{S_WAVE}
        s_lshl_b32 s{S_T0}, s{S_T0}, 7
        s_add_u32 s{S_T0}, s{S_T0}, {WS_STAMP}
        v_lshlrev_b32 v2, 2, v1
        v_cmp_gt_u32 vcc, 32, v1
        v_mov_b32 v3, {OOB}
        s_nop 1
        v_cndmask_b32 v2, v3, v2, vcc
        buffer_store_dword v{VST}, v2, {S(SRD_WS)}, s{S_T0} offen
        """)
    a.label("L_end")
    a("s_endpgm")
    hdr = f"; @launch grid=({NWG},1,1) block=(512,1,1) lds={LDS_END}\n"
    out = hdr + '.amdgcn_target "amdgcn-amd-amdhsa--gfx950"\n.text\n' + a.text()
    out += '.section .rodata,"a"\n' + kd(NAME, 256)
    return out


if __name__ == "__main__":
    st = "stamps" in sys.argv[2:]
    for x in sys.argv[2:]:
        if "=" in x:
            k, v = x.split("=")
            assert k in P
            P[k] = v if isinstance(P[k], str) else int(v)
    open(sys.argv[1], "w").write(gen(st))
```

```python
import sys
sys.path.insert(0, "dev")
from genlib import Asm, vr, sr, kd

NAME = "gated_mix__ssm_conv_h3__dense_activation_mish__prompt_kernel"
NWG = 224
WS_ACT = 0
WS_KVT = 8 << 20
WS_Y2T = 10 << 20
WS_G = 12 << 20
WS_FLAG = 15 << 20
FP = WS_FLAG
FA = WS_FLAG + (64 << 10)
FY = WS_FLAG + (320 << 10)
WS_STAMP = 16 << 20
WS_SIZE = 32 << 20
FSH = 7

S_WAVE = 3
S_T0, S_T1, S_T2, S_T3, S_T4, S_T5 = 4, 5, 6, 7, 8, 9
S_RB, S_CB, S_RBK, S_CG, S_RT2, S_CT2 = 10, 11, 12, 13, 14, 15
PTR = dict(q=16, k=18, v=20, sh=22, sk=24, sd=26, bx=28, w1=30, b1=32, w2=34, gw=36, out=38, dbg=40, ws=42)
SRD_Q, SRD_K, SRD_V, SRD_SH, SRD_W1, SRD_B1, SRD_GW, SRD_WS = 44, 48, 52, 56, 60, 64, 68, 72
SRD_SK, SRD_W2, SRD_OUT, SRD_DBG, SRD_QG = 76, 80, 84, 88, 92
S_NON = 96
S_TM = 98
S_D = 100
S_M0 = 101
S_SOX, S_SOW = 28, 29
S_KC, S_TBL, S_R0, S_R1, S_AB, S_WB = 18, 19, 20, 21, 22, 23
S_PL, S_PH = 24, 25
S_LOG, S_SPIN, S_KVO, S_W2O = 32, 33, 36, 37
S_CQ, S_CW = 34, 35
S_YF, S_YB = 38, 39
SIZE = dict(q=2048*448*2, k=2048*448*2, v=2048*448*2, sh=448*4*2, sk=448*2048*2, sd=448*2, w1=448*1792*2,
            b1=1792*2, w2=1792*448*2, gw=448*2, out=2048*448*2, ws=WS_SIZE, dbg=256)
OOB = 0x7fff0000

SA = [98304, 0, 32768, 65536]
UB = 65536
UP = 4160
KB = 132096
KT = 141312
LT = 150528
LSM = 158720
LDS_END = 163840
XB = 147456
EXTRA = 131072

P = dict(pt=1, ff=1, pk=1, fa_pre=1, il=12, yf_at=4, ep_at=8, epl_at=6, tbi="", tpre=7, pw2=99, pwm="", rv="1200", ac_at=99, acs=10, apost=0, mal="sc1", mper=6, fa_at=40, sleep=2, rot=1, nt=1, cs="P,Q,0011", c4d=2, pflag=10, g_ld=5, g_cmp=12, poll_at=19, pchk=23,
         k_at=7, ua_at=30, ub_at=31, mpre=4, w2p="14-27:1,28-31:1,40-110/2:1", ap_at=62, tailk=2, ndir=10,
         tcv="", yf_tb=3, yp_at=16, yc_at=18, lag=3, mq="", mw1="", mw2="", st="b,g", newmap=1)


class Cnt:
    def __init__(self, a, name, cap):
        self.a, self.name, self.cap = a, name, cap
        self.alts = [[]]
    def issue(self, tag, n=1):
        for q in self.alts:
            q.extend([tag] * n)
    def wait(self, tag):
        ns = []
        for q in self.alts:
            if tag in q:
                idx = max(i for i, t in enumerate(q) if t == tag)
                ns.append(len(q) - 1 - idx)
        if not ns:
            return
        n = min(min(ns), self.cap)
        self.a(f"s_waitcnt {self.name}({n})")
        self.alts = [q[len(q) - n:] if n and len(q) > n else (q if n else []) for q in self.alts]
        self.dedup()
    def dedup(self):
        u = []
        for q in self.alts:
            if q not in u:
                u.append(q)
        self.alts = u
    def wait_all(self):
        self.a(f"s_waitcnt {self.name}(0)")
        self.alts = [[]]
    def clear(self):
        self.alts = [[]]
    def save(self):
        return [list(q) for q in self.alts]
    def load(self, s):
        self.alts = [list(q) for q in s]
    def merge(self, s):
        self.alts = self.alts + [list(q) for q in s]
        self.dedup()


def gen(stamps=False):
    a = Asm()
    vm = Cnt(a, "vmcnt", 62)
    lg = Cnt(a, "lgkmcnt", 15)
    nst = [0]
    names = {}
    VST = 23
    VPT = 30
    STS = set(P["st"].split(","))

    def stamp(name, grp="b"):
        if not stamps or grp not in STS:
            return
        assert nst[0] < 30
        a(f"""
        s_memtime s[{S_TM}:{S_TM+1}]
        s_waitcnt lgkmcnt(0)
        v_writelane_b32 v{VST}, s{S_TM}, {nst[0]}
        """)
        lg.clear()
        names[nst[0]] = name
        nst[0] += 1

    def srd(dst, name):
        p = PTR[name]
        a(f"""
        s_mov_b32 s{dst}, s{p}
        s_and_b32 s{dst+1}, s{p+1}, 0xffff
        s_mov_b32 s{dst+2}, {SIZE[name]}
        s_mov_b32 s{dst+3}, 0x00020000
        """)

    def S(x):
        return f"s[{x}:{x+3}]"

    def poll_check(vflag, vaddr, soff_reg, mask=None):
        l_ok = a.newlabel("L_pok")
        l_re = a.newlabel("L_pre")
        def test():
            a(f"v_cmp_ne_u64 vcc, s[{S_NON}:{S_NON+1}], v[{vflag}:{vflag+1}]")
            if mask is not None:
                a(f"s_and_b32 vcc_lo, vcc_lo, {mask}")
            a("s_cmp_lg_u64 vcc, 0")
        test()
        a(f"s_cbranch_scc0 {l_ok}")
        a.label(l_re)
        a(f"""
        s_cmp_eq_u32 s{S_SPIN}, 0
        s_cbranch_scc1 {l_ok}
        s_sub_u32 s{S_SPIN}, s{S_SPIN}, 1
        s_sleep {P["sleep"]}
        buffer_load_dwordx2 v[{vflag}:{vflag+1}], v{vaddr}, {S(SRD_WS)}, s{soff_reg} offen sc1
        s_waitcnt vmcnt(0)
        """)
        test()
        a(f"s_cbranch_scc1 {l_re}")
        a.label(l_ok)

    a.raw(f".globl {NAME}\n.p2align 8\n.type {NAME},@function")
    a.label(NAME)
    NT = " nt" if P["nt"] else ""
    MQ, MW1, MW2 = [(" " + P[x].replace("+", " ")) if P[x] else "" for x in ("mq", "mw1", "mw2")]
    a(f"""
    s_cmp_ge_u32 s2, {NWG}
    s_cbranch_scc1 L_end
    s_load_dwordx16 s[16:31], s[0:1], 0
    s_load_dwordx8 s[32:39], s[0:1], 64
    s_load_dwordx4 s[40:43], s[0:1], 96
    v_lshrrev_b32 v2, 6, v0
    v_and_b32 v1, 63, v0
    s_and_b32 s{S_T0}, s2, 7
    v_readfirstlane_b32 s{S_WAVE}, v2
    s_lshr_b32 s{S_T1}, s2, 3
    s_mul_i32 s{S_T2}, s{S_T1}, 9363
    s_lshr_b32 s{S_T2}, s{S_T2}, 16
    s_mul_i32 s{S_T3}, s{S_T2}, 7
    s_sub_u32 s{S_T3}, s{S_T1}, s{S_T3}
    """)
    a(f"""
    s_lshr_b32 s{S_RB}, s{S_T0}, 1
    s_lshl_b32 s{S_RB}, s{S_RB}, 2
    s_add_u32 s{S_RB}, s{S_RB}, s{S_T2}
    s_and_b32 s{S_T1}, s{S_T0}, 1
    s_mul_i32 s{S_CB}, s{S_T1}, 7
    s_add_u32 s{S_CB}, s{S_CB}, s{S_T3}
    s_lshr_b32 s{S_CG}, s2, 5
    s_and_b32 s{S_RBK}, s2, 31
    """)
    if P["newmap"]:
        a(f"""
        s_lshl_b32 s{S_RT2}, s{S_RB}, 1
        s_add_u32 s{S_RT2}, s{S_RT2}, s{S_T1}
        """)
    else:
        a(f"""
        s_lshl_b32 s{S_RT2}, s{S_T0}, 2
        s_add_u32 s{S_RT2}, s{S_RT2}, s{S_T2}
        """)
    a(f"""
    s_mov_b32 s{S_CT2}, s{S_T3}
    """)
    RA, RB_, RC, RD_ = [int(c) for c in P["rv"]]
    if P["rv"] == "1200":
        a(f"""
        s_lshl_b32 s{S_T4}, s{S_T2}, 1
        s_add_u32 s{S_T4}, s{S_T4}, s{S_T3}
        s_cmp_ge_u32 s{S_T4}, 7
        s_cselect_b32 s{S_T5}, 7, 0
        s_sub_u32 s{S_T5}, s{S_T4}, s{S_T5}
        """)
    else:
        a(f"""
        s_mul_i32 s{S_T4}, s{S_T3}, {RA}
        s_mul_i32 s{S_T5}, s{S_T2}, {RB_}
        s_add_u32 s{S_T4}, s{S_T4}, s{S_T5}
        s_lshr_b32 s{S_T5}, s{S_T0}, 1
        s_mul_i32 s{S_T5}, s{S_T5}, {RC}
        s_add_u32 s{S_T4}, s{S_T4}, s{S_T5}
        s_mul_i32 s{S_T5}, s{S_T1}, {RD_}
        s_add_u32 s{S_T4}, s{S_T4}, s{S_T5}
        s_mul_i32 s{S_T5}, s{S_T4}, 9363
        s_lshr_b32 s{S_T5}, s{S_T5}, 16
        s_mul_i32 s{S_T5}, s{S_T5}, 7
        s_sub_u32 s{S_T5}, s{S_T4}, s{S_T5}
        """)
    VXE, VXO, VWO = 12, 13, 14
    a(f"""
    s_movk_i32 s{S_T2}, 896
    v_and_b32 v2, 7, v0
    v_lshrrev_b32 v3, 3, v0
    s_lshl_b32 s{S_T0}, s{S_RBK}, 6
    v_add_u32 v4, s{S_T0}, v3
    v_mul_lo_u32 v6, v4, s{S_T2}
    v_lshl_add_u32 v6, v2, 4, v6
    v_lshrrev_b32 v2, 3, v1
    s_lshl_b32 s{S_T0}, s{S_WAVE}, 4
    v_add_u32 v2, s{S_T0}, v2
    v_mul_lo_u32 v2, v2, s{S_T2}
    v_and_b32 v3, 7, v1
    v_lshrrev_b32 v4, 4, v1
    v_xor_b32 v3, v3, v4
    v_lshl_add_u32 v{VXE}, v3, 4, v2
    v_xor_b32 v3, 4, v3
    v_lshl_add_u32 v{VXO}, v3, 4, v2
    v_add_u32 v{VXO}, {8*896}, v{VXO}
    s_lshl_b32 s{S_T0}, s{S_WAVE}, 3
    v_add_u32 v2, s{S_T0}, v4
    s_movk_i32 s{S_T2}, 3584
    v_mul_lo_u32 v2, v2, s{S_T2}
    v_and_b32 v3, 15, v1
    v_lshlrev_b32 v5, 2, v4
    v_xor_b32 v3, v3, v5
    v_lshl_add_u32 v{VWO}, v3, 4, v2
    s_lshl_b32 s{S_M0}, s{S_WAVE}, 11
    s_lshl_b32 s{S_T1}, s{S_CG}, 7
    s_lshl_b32 s{S_T3}, s{S_WAVE}, 10
    s_add_u32 m0, s{S_T3}, {KT + 1024}
    v_mov_b32 v10, {OOB}
    s_waitcnt lgkmcnt(0)
    """)
    W2R = 144
    VK, VV, VW, T = 144, 160, 164, 180
    VB = 208
    VGX, VGW, GT = 100, 108, 136
    VW2G, VL16 = 140, 143
    ACC1 = 32
    FR = 64
    srd(SRD_K, "k"); srd(SRD_V, "v")
    a(f"""
    buffer_load_dwordx4 v6, {S(SRD_K)}, s{S_T1} offen{NT} lds
    buffer_load_dwordx4 {vr(VV,4)}, v6, {S(SRD_V)}, s{S_T1} offen{NT}
    """)
    vm.issue("kv", 2)
    srd(SRD_SH, "sh"); srd(SRD_B1, "b1"); srd(SRD_GW, "gw")

    def small_loads():
        l_skip = a.newlabel("L_sm")
        a(f"""
        s_cmp_ge_u32 s{S_WAVE}, 4
        s_cbranch_scc1 {l_skip}
        v_lshlrev_b32 v2, 4, v1
        """)
        l1 = a.newlabel("L_sm1"); l2 = a.newlabel("L_sm2"); l3 = a.newlabel("L_sm3")
        a(f"""
        s_cmp_eq_u32 s{S_WAVE}, 1
        s_cbranch_scc1 {l1}
        s_cmp_eq_u32 s{S_WAVE}, 2
        s_cbranch_scc1 {l2}
        s_cmp_eq_u32 s{S_WAVE}, 3
        s_cbranch_scc1 {l3}
        v_lshrrev_b32 v3, 3, v1
        s_lshl_b32 s{S_T0}, s{S_RBK}, 6
        s_sub_u32 s{S_T0}, s{S_T0}, 8
        v_add_u32 v3, s{S_T0}, v3
        s_movk_i32 s{S_T2}, 896
        v_mul_lo_u32 v4, v3, s{S_T2}
        v_and_b32 v5, 7, v1
        v_cmp_le_i32 vcc, 0, v3
        v_lshl_add_u32 v4, v5, 4, v4
        s_lshl_b32 s{S_T1}, s{S_CG}, 7
        s_mov_b32 m0, {KT}
        v_cndmask_b32 v4, v10, v4, vcc
        buffer_load_dwordx4 v4, {S(SRD_K)}, s{S_T1} offen lds
        s_branch {l_skip}
        """)
        a.label(l1)
        a(f"""
        s_lshl_b32 s{S_T1}, s{S_CG}, 9
        s_mov_b32 m0, {LSM}
        s_nop 0
        buffer_load_dwordx4 v2, {S(SRD_SH)}, s{S_T1} offen lds
        s_branch {l_skip}
        """)
        a.label(l2)
        a(f"""
        s_lshl_b32 s{S_T1}, s{S_CB}, 8
        s_mov_b32 m0, {LSM+1024}
        s_nop 0
        buffer_load_dwordx4 v2, {S(SRD_B1)}, s{S_T1} offen lds
        s_branch {l_skip}
        """)
        a.label(l3)
        a(f"""
        s_mov_b32 m0, {LSM+2048}
        s_nop 0
        buffer_load_dwordx4 v2, {S(SRD_GW)}, 0 offen lds
        """)
        a.label(l_skip)

    def chunk_part(t, i):
        st = SA[t & 3]
        tag = f"c{t}"
        if i == 0:
            a(f"""
            s_lshl_b32 s{S_CQ}, s{S_KC}, 7
            s_add_u32 m0, s{S_M0}, {st}
            s_add_u32 s{S_CQ}, s{S_CQ}, s{S_SOX}
            s_mul_i32 s{S_CW}, s{S_KC}, {64*3584}
            buffer_load_dwordx4 v{VXE}, {S(SRD_Q)}, s{S_CQ} offen{MQ} lds
            s_add_u32 s{S_CW}, s{S_CW}, s{S_SOW}
            s_add_u32 s{S_KC}, s{S_KC}, 1
            """)
            if P["rot"]:
                a(f"""
                s_cmp_eq_u32 s{S_KC}, 7
                s_cselect_b32 s{S_KC}, 0, s{S_KC}
                """)
        elif i == 1:
            a(f"""
            s_add_u32 m0, s{S_M0}, {st+16384}
            s_nop 0
            buffer_load_dwordx4 v{VWO}, {S(SRD_W1)}, s{S_CW} offen{MW1} lds
            s_add_u32 s{S_CW}, s{S_CW}, {4*3584}
            """)
        elif i == 2:
            a(f"""
            s_add_u32 m0, s{S_M0}, {st+1024}
            s_nop 0
            buffer_load_dwordx4 v{VXO}, {S(SRD_Q)}, s{S_CQ} offen{MQ} lds
            """)
        else:
            a(f"""
            s_add_u32 m0, s{S_M0}, {st+16384+1024}
            s_nop 0
            buffer_load_dwordx4 v{VWO}, {S(SRD_W1)}, s{S_CW} offen{MW1} lds
            """)
        vm.issue(tag, 1)

    small_loads()
    srd(SRD_Q, "q"); srd(SRD_W1, "w1"); srd(SRD_W2, "w2")
    a(f"""
    s_mul_i32 s{S_SOX}, s{S_RB}, {128*896}
    s_lshl_b32 s{S_SOW}, s{S_CB}, 8
    s_mov_b32 s{S_KC}, {"s%d" % S_T5 if P["rot"] else 0}
    """)
    CS = ["P"] + P["cs"].split(",")
    for t in range(4):
        if CS[t] == "P":
            for i in range(4):
                chunk_part(t, i)
    a(f"""
    s_lshl_b32 s{S_T0}, s2, 2
    s_load_dword s{S_D}, s[{PTR['sd']}:{PTR['sd']+1}], s{S_T0}
    """)
    srd(SRD_WS, "ws"); srd(SRD_SK, "sk"); srd(SRD_OUT, "out"); srd(SRD_DBG, "dbg"); srd(SRD_QG, "q")
    a(f"""
    s_cmp_lt_u32 s{S_CB}, 8
    s_cselect_b32 s{SRD_QG+2}, s{SRD_QG+2}, 0
    s_mov_b32 s{S_SPIN}, 20000
    s_waitcnt lgkmcnt(0)
    """)
    if stamps:
        a(f"""
        v_mov_b32 v{VST}, 0
        s_memrealtime s[{S_TM}:{S_TM+1}]
        s_waitcnt lgkmcnt(0)
        v_writelane_b32 v{VST}, s{S_TM}, 31
        """)
    stamp("start")
    a(f"""
    s_or_b32 s{S_T0}, s2, s{S_WAVE}
    s_cmp_lg_u32 s{S_T0}, 0
    s_cbranch_scc1 L_nononce
    s_memrealtime s[{S_NON}:{S_NON+1}]
    s_waitcnt lgkmcnt(0)
    s_or_b32 s{S_NON}, s{S_NON}, 1
    v_mov_b32 v2, s{S_NON}
    v_mov_b32 v3, s{S_NON+1}
    v_lshlrev_b32 v4, 8, v1
    buffer_store_dwordx2 v[2:3], v4, {S(SRD_DBG)}, 0 offen sc1
    """)
    a.label("L_nononce")
    if P["pt"]:
        a(f"""
        s_mul_i32 s{S_T0}, s{S_RB}, 28
        s_lshl_b32 s{S_T1}, s{S_CB}, 1
        s_add_u32 s{S_T0}, s{S_T0}, s{S_T1}
        s_and_b32 s{S_T1}, s{S_WAVE}, 1
        s_add_u32 s{S_T0}, s{S_T0}, s{S_T1}
        s_lshl_b32 s{S_T0}, s{S_T0}, 2
        s_lshr_b32 s{S_T1}, s{S_WAVE}, 1
        s_add_u32 s{S_T0}, s{S_T0}, s{S_T1}
        s_lshl_b32 s{S_T0}, s{S_T0}, 7
        s_add_u32 s{S_T0}, s{S_T0}, {FA}
        v_mov_b32 v2, {OOB}
        s_lshl_b32 s{S_T1}, s2, 3
        v_writelane_b32 v2, s{S_T0}, 0
        s_add_u32 s{S_T1}, s{S_T1}, s{S_WAVE}
        s_lshl_b32 s{S_T1}, s{S_T1}, 7
        s_add_u32 s{S_T0}, s{S_T1}, {FY}
        v_writelane_b32 v2, s{S_T0}, 1
        s_lshl_b32 s{S_T0}, s2, 7
        s_add_u32 s{S_T0}, s{S_T0}, {FP}
        v_writelane_b32 v2, s{S_T0}, 2
        s_and_b32 s{S_T0}, s{S_T1}, 0x1f80
        s_add_u32 s{S_T0}, s{S_T0}, {WS_G}
        v_writelane_b32 v2, s{S_T0}, 3
        buffer_load_dword v{VPT}, v2, {S(SRD_WS)}, 0 offen sc1
        """)
        vm.issue("pt")
    def w2_warm():
        a(f"""
        s_mul_i32 s{S_T0}, s2, 7168
        v_lshlrev_b32 v2, 4, v0
        v_cmp_gt_u32 vcc, 448, v0
        v_mov_b32 v3, {OOB}
        s_nop 0
        v_cndmask_b32 v2, v3, v2, vcc
        buffer_load_dwordx4 v[240:243], v2, {S(SRD_W2)}, s{S_T0} offen{" " + P["pwm"].replace("+", " ") if P["pwm"] else ""}
        """)
        vm.issue("pw2")
    if P["pw2"] == -1:
        w2_warm()
    a(f"""
    s_and_b32 s{S_T0}, s{S_RB}, 3
    s_add_u32 s{S_T0}, s{S_T0}, s{S_CT2}
    s_mul_i32 s{S_T1}, s{S_T0}, 11
    s_lshr_b32 s{S_T1}, s{S_T1}, 5
    s_mul_i32 s{S_T1}, s{S_T1}, 3
    s_sub_u32 s{S_T1}, s{S_T0}, s{S_T1}
    s_and_b32 s{S_T0}, s{S_T0}, 3
    s_lshl_b32 s{S_T0}, s{S_T0}, 2
    s_lshl_b32 s{S_T1}, s{S_T1}, 2
    s_lshr_b32 s{S_T0}, 0x64206420, s{S_T0}
    s_and_b32 s{S_T0}, s{S_T0}, 0xffff
    s_lshr_b32 s{S_T1}, 0x531531, s{S_T1}
    s_and_b32 s{S_T1}, s{S_T1}, 0xfff
    s_lshl_b32 s{S_T2}, s{S_T1}, 16
    s_or_b32 s{S_T2}, s{S_T2}, s{S_T0}
    s_lshl_b32 s{S_T3}, s{S_T0}, 12
    s_or_b32 s{S_T3}, s{S_T3}, s{S_T1}
    s_bitcmp1_b32 s{S_WAVE}, 0
    s_cselect_b32 s{S_TBL}, s{S_T3}, s{S_T2}
    """)

    VBA = 16
    VBB = 24
    VAA = 20
    VAB = 28
    a(f"""
    s_lshr_b32 s{S_T0}, s{S_WAVE}, 1
    s_lshl_b32 s{S_T0}, s{S_T0}, 5
    v_and_b32 v2, 31, v1
    v_add_u32 v2, s{S_T0}, v2
    v_lshrrev_b32 v3, 5, v1
    v_bfe_u32 v4, v2, 1, 3
    v_xor_b32 v3, v3, v4
    v_lshlrev_b32 v3, 4, v3
    v_lshl_add_u32 v{VBA}, v2, 7, v3
    v_xor_b32 v{VBA+1}, 32, v{VBA}
    v_xor_b32 v{VBA+2}, 64, v{VBA}
    v_xor_b32 v{VBA+3}, 0x60, v{VBA}
    v_add_u32 v{VBB}, 0x10000, v{VBA}
    v_add_u32 v{VBB+1}, 0x10000, v{VBA+1}
    v_add_u32 v{VBB+2}, 0x10000, v{VBA+2}
    v_add_u32 v{VBB+3}, 0x10000, v{VBA+3}
    v_bfe_u32 v2, v1, 4, 1
    v_lshrrev_b32 v3, 5, v1
    v_bfe_u32 v4, v1, 2, 2
    v_and_b32 v5, 3, v1
    v_lshl_add_u32 v6, v3, 3, v4
    v_lshlrev_b32 v6, 8, v6
    s_and_b32 s{S_T0}, s{S_WAVE}, 1
    s_lshl_b32 s{S_T0}, s{S_T0}, 3
    v_lshl_add_u32 v7, v2, 1, s{S_T0}
    v_lshrrev_b32 v8, 1, v5
    v_add_u32 v7, v7, v8
    v_lshlrev_b32 v8, 2, v4
    v_xor_b32 v7, v7, v8
    v_lshl_add_u32 v6, v7, 4, v6
    v_and_b32 v5, 1, v5
    v_lshl_add_u32 v{VAA}, v5, 3, v6
    v_xor_b32 v{VAA+1}, 64, v{VAA}
    v_add_u32 v{VAB}, 0x10000, v{VAA}
    v_add_u32 v{VAB+1}, 0x10000, v{VAA+1}
    """)
    a(f"""
    v_lshrrev_b32 v2, 5, v1
    v_bfe_u32 v3, v1, 4, 1
    v_lshlrev_b32 v2, 4, v2
    v_lshl_add_u32 v2, v3, 2, v2
    v_bfe_u32 v3, v1, 3, 1
    v_lshl_add_u32 v2, v3, 3, v2
    v_mul_u32_u24 v2, 896, v2
    v_and_b32 v3, 7, v1
    v_lshl_add_u32 v{VW2G}, v3, 4, v2
    v_lshlrev_b32 v{VL16}, 4, v1
    s_mul_i32 s{S_WB}, s{S_WAVE}, {14*16*896}
    s_lshl_b32 s{S_T0}, s{S_CT2}, 7
    s_add_u32 s{S_WB}, s{S_WB}, s{S_T0}
    s_mov_b32 s{S_PL}, 0x05040100
    s_mov_b32 s{S_PH}, 0x07060302
    """)
    a(f"""
    v_mov_b32 v4, 0
    v_mov_b32 v5, 0
    v_mov_b32 v6, 0
    v_mov_b32 v7, 0
    v_min_u32 v2, 29, v1
    v_lshlrev_b32 v2, 4, v2
    v_add_u32 v2, {KB}, v2
    ds_write_b128 v2, v[4:7]
    ds_write_b128 v2, v[4:7] offset:4608
    """)
    lg.issue("z", 2)

    w2cnt = {}
    for it in P["w2p"].split(","):
        rng, c = it.split(":")
        lo, hi = (rng.split("-") + [rng])[:2] if "-" in rng else (rng, rng)
        step = 1
        if "/" in hi:
            hi, step = hi.split("/")
        for pt in range(int(lo), int(hi) + 1, int(step)):
            w2cnt[pt] = w2cnt.get(pt, 0) + int(c)
    w2i = [0]
    def w2_emit(n):
        for _ in range(n):
            k = w2i[0]
            if k >= 28:
                return
            w2i[0] += 1
            sl, j = k >> 2, k & 3
            if j == 0:
                a(f"""
                s_bfe_u32 s{S_W2O}, s{S_TBL}, {(4 * sl) | (4 << 16)}
                s_mul_i32 s{S_W2O}, s{S_W2O}, {32*896}
                s_add_u32 s{S_W2O}, s{S_W2O}, s{S_WB}
                """)
            a(f"buffer_load_dwordx4 {vr(W2R+16*sl+4*j,4)}, v{VW2G}, {S(SRD_W2)}, s{S_W2O} offen offset:{896*j}{MW2}")
            vm.issue(f"w{sl}")

    EV = {}
    def at(pt, f):
        EV.setdefault(pt, []).append(f)
    def fire(pt):
        for f in EV.get(pt, []):
            f()
        w2_emit(w2cnt.get(pt, 0))

    a(f"""
    v_lshlrev_b32 v2, 4, v0
    v_add_u32 v2, {KT + 1024 - 384}, v2
    v_and_b32 v3, 7, v0
    v_lshlrev_b32 v3, 6, v3
    v_add_u32 v3, {LSM}, v3
    s_and_b32 s{S_T0}, s{S_WAVE}, 1
    s_lshl_b32 s{S_T0}, s{S_T0}, 7
    s_add_u32 s{S_T0}, s{S_T0}, {LSM+1024}
    v_lshrrev_b32 v4, 5, v1
    v_lshl_add_u32 v4, v4, 3, s{S_T0}
    """)
    vm.wait("kv")
    a("s_barrier")
    stamp("kv")
    for j in range(4):
        a(f"ds_read_b128 {vr(VK+4*j,4)}, v2 offset:{384-128*j}")
    for j in range(4):
        a(f"ds_read_b128 {vr(VW+4*j,4)}, v3 offset:{16*j}")
    lg.issue("kvr", 8)
    for i in range(4):
        a(f"ds_read_b64 {vr(VB+2*i,2)}, v4 offset:{16*i}")
    lg.issue("b0", 4)
    a(f"""
    v_lshrrev_b32 v2, 3, v0
    v_sub_u32 v2, 63, v2
    v_and_b32 v3, 7, v0
    v_lshlrev_b32 v3, 4, v3
    v_lshl_add_u32 v2, v2, 7, v3
    v_add_u32 v2, {LT}, v2
    """)
    lg.wait("kvr")
    for i in range(4, 8):
        a(f"ds_read_b64 {vr(VB+2*i,2)}, v4 offset:{16*i}")
    lg.issue("b1", 4)
    for d in range(4):
        t = T + 8 * (d & 1)
        c0, c1 = 2*d, 2*d+1
        a(f"""
        v_perm_b32 v{t}, v{VK+4+d}, v{VK+d}, s{S_PL}
        v_perm_b32 v{t+1}, v{VK+4+d}, v{VK+d}, s{S_PH}
        v_perm_b32 v{t+2}, v{VK+12+d}, v{VK+8+d}, s{S_PL}
        v_perm_b32 v{t+3}, v{VK+12+d}, v{VK+8+d}, s{S_PH}
        v_dot2_f32_bf16 v{t+4}, v{t}, v{VW+2*c0}, 0
        v_dot2_f32_bf16 v{t+5}, v{t+1}, v{VW+2*c1}, 0
        v_lshlrev_b32 v{t+6}, 16, v{VV+d}
        v_and_b32 v{t+7}, 0xffff0000, v{VV+d}
        v_dot2_f32_bf16 v{t+4}, v{t+2}, v{VW+2*c0+1}, v{t+4}
        v_dot2_f32_bf16 v{t+5}, v{t+3}, v{VW+2*c1+1}, v{t+5}
        s_nop 2
        v_mul_f32 v{t+4}, v{t+4}, v{t+6}
        v_mul_f32 v{t+5}, v{t+5}, v{t+7}
        v_cvt_pk_bf16_f32 v{T+20+d}, v{t+4}, v{t+5}
        """)
    a(f"ds_write_b128 v2, {vr(T+20,4)}")
    lg.issue("tw")
    a(f"""
    s_lshr_b32 s{S_T0}, s{S_WAVE}, 2
    s_lshl_b32 s{S_T0}, s{S_T0}, 2
    v_lshrrev_b32 v2, 4, v1
    v_add_u32 v2, s{S_T0}, v2
    v_bfe_u32 v3, v1, 2, 2
    v_lshl_add_u32 v3, v2, 3, v3
    v_lshlrev_b32 v3, 7, v3
    v_and_b32 v4, 3, v1
    s_and_b32 s{S_T1}, s{S_WAVE}, 3
    s_lshl_b32 s{S_T2}, s{S_T1}, 5
    s_add_u32 s{S_T2}, s{S_T2}, {LT}
    v_lshl_add_u32 v4, v4, 3, s{S_T2}
    v_add_u32 v3, v3, v4
    s_lshl_b32 s{S_T2}, s{S_CG}, 6
    s_lshl_b32 s{S_T1}, s{S_T1}, 4
    s_add_u32 s{S_T2}, s{S_T2}, s{S_T1}
    v_and_b32 v4, 15, v1
    v_add_u32 v4, s{S_T2}, v4
    v_lshlrev_b32 v4, 12, v4
    v_lshl_add_u32 v11, v2, 4, v4
    s_lshl_b32 s{S_KVO}, s{S_RBK}, 7
    s_sub_u32 s{S_KVO}, {WS_KVT + 1984*2}, s{S_KVO}
    v_mov_b32 v9, 0
    """)
    lg.wait("b1")
    for ft in range(2):
        for g in range(4):
            for jj in range(2):
                src = VB + 2*(4*ft+g) + jj
                a(f"v_lshlrev_b32 v{ACC1+16*ft+4*g+2*jj}, 16, v{src}")
                a(f"v_and_b32 v{ACC1+16*ft+4*g+2*jj+1}, 0xffff0000, v{src}")
    for t in range(4):
        if CS[t] == "Q":
            for i in range(4):
                chunk_part(t, i)
    stamp("prep")

    VNON = 30
    VGROW = 15
    def kvt_store():
        lg.wait("kvtr")
        a(f"""
        buffer_store_dwordx4 {vr(T+24,4)}, v11, {S(SRD_WS)}, s{S_KVO} offen sc1
        buffer_load_dwordx2 v[{VNON}:{VNON+1}], v9, {S(SRD_DBG)}, 0 offen sc1
        """)
        vm.issue("pst")
        vm.issue("non")

    def gate_loads():
        a(f"""
        v_lshrrev_b32 v2, 5, v1
        s_lshl_b32 s{S_T0}, s{S_RB}, 7
        s_lshr_b32 s{S_T1}, s{S_WAVE}, 1
        s_lshl_b32 s{S_T1}, s{S_T1}, 5
        s_add_u32 s{S_T0}, s{S_T0}, s{S_T1}
        s_lshl_b32 s{S_T1}, s{S_CB}, 2
        s_add_u32 s{S_T0}, s{S_T0}, s{S_T1}
        s_and_b32 s{S_T1}, s{S_WAVE}, 1
        s_lshl_b32 s{S_T1}, s{S_T1}, 1
        s_add_u32 s{S_T0}, s{S_T0}, s{S_T1}
        v_add_u32 v{VGROW}, s{S_T0}, v2
        v_mul_u32_u24 v2, 896, v{VGROW}
        v_and_b32 v3, 31, v1
        v_lshlrev_b32 v4, 4, v3
        v_cmp_gt_u32 vcc, 28, v3
        v_add_u32 v2, v2, v4
        v_min_u32 v3, 27, v3
        v_cndmask_b32 v2, v10, v2, vcc
        buffer_load_dwordx4 {vr(VGX,4)}, v2, {S(SRD_QG)}, 0 offen
        buffer_load_dwordx4 {vr(VGX+4,4)}, v2, {S(SRD_QG)}, 0 offen offset:448
        v_lshlrev_b32 v3, 4, v3
        v_add_u32 v3, {LSM+2048}, v3
        ds_read_b128 {vr(VGW,4)}, v3
        ds_read_b128 {vr(VGW+4,4)}, v3 offset:448
        """)
        vm.issue("g", 2)
        lg.issue("gwr", 2)

    def gate_dot():
        vm.wait("g")
        lg.wait("gwr")
        for d in range(4):
            a(f"v_dot2_f32_bf16 v{GT+d}, v{VGX+d}, v{VGW+d}, 0")
        for d in range(4):
            a(f"v_dot2_f32_bf16 v{GT+d}, v{VGX+4+d}, v{VGW+4+d}, v{GT+d}")

    def gate_red1():
        a(f"""
        v_add_f32 v{GT}, v{GT}, v{GT+1}
        v_add_f32 v{GT+2}, v{GT+2}, v{GT+3}
        v_and_b32 v2, 31, v1
        v_add_f32 v{GT}, v{GT}, v{GT+2}
        v_lshlrev_b32 v3, 2, v{VGROW}
        v_add_u32 v3, {WS_G}, v3
        v_add_f32_dpp v{GT}, v{GT}, v{GT} quad_perm:[1,0,3,2] row_mask:0xf bank_mask:0xf
        v_cmp_eq_u32 vcc, 0, v2
        s_cmp_lt_u32 s{S_CB}, 8
        v_add_f32_dpp v{GT}, v{GT}, v{GT} quad_perm:[2,3,0,1] row_mask:0xf bank_mask:0xf
        s_cselect_b64 vcc, vcc, 0
        v_cndmask_b32 v{VGROW}, v10, v3, vcc
        v_add_f32_dpp v{GT}, v{GT}, v{GT} row_half_mirror row_mask:0xf bank_mask:0xf
        """)

    def gate_red2():
        a(f"""
        v_add_f32_dpp v{GT}, v{GT}, v{GT} row_mirror row_mask:0xf bank_mask:0xf
        v_mov_b32 v{GT+1}, v{GT}
        s_nop 1
        v_permlane16_swap_b32 v{GT}, v{GT+1}
        s_nop 1
        v_add_f32 v{GT}, v{GT}, v{GT+1}
        v_cvt_pk_bf16_f32 v{GT}, v{GT}, v{GT}
        v_lshlrev_b32 v{GT}, 16, v{GT}
        v_mul_f32 v{GT}, 0xbfb8aa3b, v{GT}
        v_exp_f32 v{GT}, v{GT}
        """)

    def gate_fin():
        a(f"""
        v_add_f32 v{GT}, 1.0, v{GT}
        v_rcp_f32 v{GT}, v{GT}
        s_nop 0
        v_cvt_pk_bf16_f32 v{GT}, v{GT}, v{GT}
        v_lshlrev_b32 v{GT}, 16, v{GT}
        buffer_store_dword v{GT}, v{VGROW}, {S(SRD_WS)}, 0 offen sc1
        """)
        vm.issue("gst")

    def nonce_check():
        vm.wait("non")
        l_ok = a.newlabel("L_nok")
        l_re = a.newlabel("L_nre")
        a(f"""
        v_readfirstlane_b32 s{S_NON}, v{VNON}
        v_readfirstlane_b32 s{S_NON+1}, v{VNON+1}
        s_cmp_lg_u32 s{S_NON}, 0
        s_cbranch_scc1 {l_ok}
        """)
        a.label(l_re)
        a(f"""
        s_cmp_eq_u32 s{S_SPIN}, 0
        s_cbranch_scc1 {l_ok}
        s_sub_u32 s{S_SPIN}, s{S_SPIN}, 1
        s_sleep {P["sleep"]}
        buffer_load_dwordx2 v[{VNON}:{VNON+1}], v9, {S(SRD_DBG)}, 0 offen sc1
        s_waitcnt vmcnt(0)
        v_readfirstlane_b32 s{S_NON}, v{VNON}
        v_readfirstlane_b32 s{S_NON+1}, v{VNON+1}
        s_cmp_eq_u32 s{S_NON}, 0
        s_cbranch_scc1 {l_re}
        """)
        a.label(l_ok)

    def flag_store(soff_expr_lines, sreg, full=True):
        a(soff_expr_lines)
        a(f"""
        v_mov_b32 v2, s{S_NON}
        v_mov_b32 v3, s{S_NON+1}
        """)
        if P["ff"] and full:
            a(f"""
            v_cmp_gt_u32 vcc, 16, v1
            v_mov_b32 v4, {OOB}
            v_lshlrev_b32 v5, 3, v1
            v_cndmask_b32 v4, v4, v5, vcc
            buffer_store_dwordx2 v[2:3], v4, {S(SRD_WS)}, s{sreg} offen sc1
            """)
        else:
            a(f"""
            v_cmp_eq_u32 vcc, 0, v1
            v_mov_b32 v4, {OOB}
            s_nop 0
            v_cndmask_b32 v4, v4, 0, vcc
            buffer_store_dwordx2 v[2:3], v4, {S(SRD_WS)}, s{sreg} offen sc1
            """)
        vm.issue("flag")

    def prep_flag():
        nonce_check()
        stamp("pflag", "p")
        flag_store(f"""
        s_lshl_b32 s{S_T0}, s2, {FSH}
        s_lshl_b32 s{S_T1}, s{S_WAVE}, 3
        s_add_u32 s{S_T0}, s{S_T0}, s{S_T1}
        s_add_u32 s{S_T0}, s{S_T0}, {FP}
        """, S_T0, False)

    def kbuf_dma():
        a(f"""
        s_lshr_b32 s{S_T1}, s{S_WAVE}, 2
        s_and_b32 s{S_T2}, s{S_WAVE}, 3
        s_mul_i32 s{S_T3}, s{S_T1}, 4608
        s_lshl_b32 s{S_T2}, s{S_T2}, 10
        s_add_u32 s{S_T3}, s{S_T3}, s{S_T2}
        s_add_u32 m0, s{S_T3}, {KB + 480}
        s_lshl_b32 s{S_T0}, s2, 13
        s_lshl_b32 s{S_T3}, s{S_WAVE}, 10
        s_add_u32 s{S_T0}, s{S_T0}, s{S_T3}
        buffer_load_dwordx4 v{VL16}, {S(SRD_SK)}, s{S_T0} offen{NT} lds
        """)
        vm.issue("K")

    VPA = 22
    def prep_poll_issue():
        a(f"""
        s_and_b32 s{S_T0}, s{S_WAVE}, 3
        s_lshl_b32 s{S_T0}, s{S_T0}, 3
        s_sub_u32 s{S_T0}, 31, s{S_T0}
        s_lshl_b32 s{S_T1}, s{S_CG}, 5
        v_lshrrev_b32 v2, 1, v1
        v_min_u32 v2, 8, v2
        v_sub_u32 v2, s{S_T0}, v2
        v_max_i32 v2, 0, v2
        v_add_u32 v2, s{S_T1}, v2
        s_lshr_b32 s{S_T1}, s{S_RBK}, 3
        s_lshl_b32 s{S_T1}, s{S_T1}, 3
        s_add_u32 s{S_T5}, s{S_T1}, {FP}
        v_lshlrev_b32 v{VPA}, {FSH}, v2
        v_and_b32 v2, 1, v1
        v_lshl_add_u32 v{VPA}, v2, 5, v{VPA}
        buffer_load_dwordx2 v[{VNON}:{VNON+1}], v{VPA}, {S(SRD_WS)}, s{S_T5} offen sc1
        """)
        vm.issue("poll")

    W = 100
    def prep_poll_check():
        vm.wait("poll")
        stamp("ppw", "p")
        a(f"""
        s_lshr_b32 s{S_T1}, s{S_RBK}, 3
        s_lshl_b32 s{S_T1}, s{S_T1}, 3
        s_add_u32 s{S_T5}, s{S_T1}, {FP}
        """)
        poll_check(VNON, VPA, S_T5)
        stamp("ppok", "p")
        a(f"""
        v_lshlrev_b32 v3, 4, v0
        v_add_u32 v4, 16, v3
        v_and_b32 v5, 255, v0
        v_cmp_ne_u32 vcc, 255, v5
        s_lshl_b32 s{S_T0}, s2, 13
        s_add_u32 s{S_T0}, s{S_T0}, {WS_KVT}
        v_cndmask_b32 v4, v10, v4, vcc
        buffer_load_dwordx4 {vr(W,4)}, v3, {S(SRD_WS)}, s{S_T0} offen sc1
        buffer_load_dwordx4 {vr(W+4,4)}, v4, {S(SRD_WS)}, s{S_T0} offen sc1
        """)
        vm.issue("U", 2)

    Bq, Cq, Dq = 108, 114, 120
    VUW = 14
    def ubuf_prep():
        a(f"""
        v_lshrrev_b32 v6, 8, v0
        v_mul_u32_u24 v6, {8*UP}, v6
        v_and_b32 v5, 255, v0
        v_lshl_add_u32 v{VUW}, v5, 4, v6
        v_add_u32 v{VUW}, {UB}, v{VUW}
        v_mov_b32 v4, 0
        v_mov_b32 v5, 0
        v_mov_b32 v6, 0
        v_mov_b32 v7, 0
        v_and_b32 v2, 15, v1
        v_mul_u32_u24 v2, {UP}, v2
        v_add_u32 v2, {UB}, v2
        ds_write_b128 v2, v[4:7] offset:4096
        """)
        lg.issue("uw")

    def ubuf_write(p):
        e = 7 - p
        aa = e >> 1
        if e & 1:
            src = (Cq + aa) if aa % 2 == 0 else (Dq + aa - 1)
        else:
            src = (W + aa) if aa % 2 == 0 else (Bq + aa - 1)
        a(f"ds_write_b128 v{VUW}, {vr(src,4)} offset:{p*UP}")
        lg.issue("uw")

    def ubuf_a():
        vm.wait("U")
        stamp("U", "p")
        ubuf_write(7); ubuf_write(3)
        for i in range(6):
            a(f"v_mov_b32 v{Bq+i}, v{W+1+i}")
        ubuf_write(5); ubuf_write(1)
    def ubuf_b():
        for i in range(6):
            a(f"v_alignbyte_b32 v{Cq+i}, v{W+i+1}, v{W+i}, 2")
        ubuf_write(6); ubuf_write(2)
        for i in range(6):
            a(f"v_alignbyte_b32 v{Dq+i}, v{W+i+2}, v{W+i+1}, 2")
        ubuf_write(4); ubuf_write(0)

    VA, VBk = 8, 9
    def conv_addr():
        a(f"""
        s_lshr_b32 s{S_T1}, s{S_WAVE}, 2
        s_bfe_u32 s{S_T2}, s{S_WAVE}, 0x10001
        s_sub_u32 s{S_T2}, 1, s{S_T2}
        s_lshl_b32 s{S_T2}, s{S_T2}, 8
        s_mul_i32 s{S_T3}, s{S_T1}, {8*UP}
        s_add_u32 s{S_T3}, s{S_T3}, s{S_T2}
        s_add_u32 s{S_T3}, s{S_T3}, {UB + 16}
        v_and_b32 v2, 7, v1
        v_mul_u32_u24 v2, {UP}, v2
        v_bfe_u32 v3, v1, 3, 1
        v_lshrrev_b32 v4, 4, v1
        v_sub_u32 v3, v4, v3
        v_lshlrev_b32 v3, 4, v3
        v_add3_u32 v{VA}, v2, v3, s{S_T3}
        s_mul_i32 s{S_T3}, s{S_T1}, 4608
        s_add_u32 s{S_T3}, s{S_T3}, s{S_T2}
        s_add_u32 s{S_T3}, s{S_T3}, {KB}
        v_and_b32 v2, 15, v1
        v_lshlrev_b32 v2, 5, v2
        v_lshl_add_u32 v2, v4, 4, v2
        v_add_u32 v{VBk}, s{S_T3}, v2
        """)

    def act_base():
        a(f"""
        s_lshr_b32 s{S_T0}, s{S_WAVE}, 1
        s_lshl_b32 s{S_T1}, s{S_RB}, 2
        s_add_u32 s{S_T0}, s{S_T0}, s{S_T1}
        s_mul_i32 s{S_T0}, s{S_T0}, 112
        s_lshl_b32 s{S_T1}, s{S_CB}, 3
        s_add_u32 s{S_T0}, s{S_T0}, s{S_T1}
        s_and_b32 s{S_T1}, s{S_WAVE}, 1
        s_lshl_b32 s{S_T1}, s{S_T1}, 2
        s_add_u32 s{S_T0}, s{S_T0}, s{S_T1}
        s_lshl_b32 s{S_AB}, s{S_T0}, 10
        s_mov_b32 s{S_LOG}, 0x3fb8aa3b
        """)

    S_FA = S_CQ
    def act_poll_issue():
        a(f"""
        s_mul_i32 s{S_T0}, s{S_WAVE}, 14
        s_add_u32 s{S_T1}, s{S_T0}, 13
        s_lshr_b32 s{S_T0}, s{S_T0}, 2
        s_lshr_b32 s{S_T1}, s{S_T1}, 2
        v_bfe_u32 v2, v1, 1, 4
        v_add_u32 v2, s{S_T0}, v2
        v_min_u32 v2, s{S_T1}, v2
        v_and_b32 v3, 1, v1
        v_lshl_add_u32 v2, v2, 2, v3
        s_bfe_u32 s{S_T0}, s{S_WAVE}, 0x10001
        s_lshl_b32 s{S_T0}, s{S_T0}, 5
        s_lshr_b32 s{S_T1}, s{S_WAVE}, 2
        s_add_u32 s{S_T0}, s{S_T0}, s{S_T1}
        v_and_b32 v3, 7, v1
        v_lshl_add_u32 v3, v3, 2, s{S_T0}
        v_cmp_gt_u32 vcc, 32, v1
        s_lshr_b32 s{S_T2}, s{S_RT2}, 1
        s_mul_i32 s{S_T2}, s{S_T2}, {28*4}
        v_cndmask_b32 v2, v3, v2, vcc
        s_and_b32 s{S_T1}, s{S_RT2}, 1
        s_lshl_b32 s{S_T1}, s{S_T1}, 1
        s_add_u32 s{S_T2}, s{S_T2}, s{S_T1}
        s_lshl_b32 s{S_T2}, s{S_T2}, {FSH}
        s_add_u32 s{S_FA}, s{S_T2}, {FA}
        v_lshlrev_b32 v{VPA}, {FSH}, v2
        buffer_load_dwordx2 v[6:7], v{VPA}, {S(SRD_WS)}, s{S_FA} offen sc1
        """)
        vm.issue("poll")

    def act_flag():
        vm.wait("act3")
        stamp("fl", "f")
        flag_store(f"""
        s_mul_i32 s{S_T0}, s{S_RB}, 28
        s_lshl_b32 s{S_T1}, s{S_CB}, 1
        s_add_u32 s{S_T0}, s{S_T0}, s{S_T1}
        s_and_b32 s{S_T1}, s{S_WAVE}, 1
        s_add_u32 s{S_T0}, s{S_T0}, s{S_T1}
        s_lshl_b32 s{S_T0}, s{S_T0}, 2
        s_lshr_b32 s{S_T1}, s{S_WAVE}, 1
        s_add_u32 s{S_T0}, s{S_T0}, s{S_T1}
        s_lshl_b32 s{S_T0}, s{S_T0}, {FSH}
        s_add_u32 s{S_T0}, s{S_T0}, {FA}
        """, S_T0)

    at(0, kvt_store)
    if P["pw2"] >= 0 and P["pw2"] < 99:
        at(P["pw2"], w2_warm)
    dma = {n: [] for n in range(28)}
    for t in range(4):
        if CS[t] not in "PQ":
            for i in range(4):
                dma[int(CS[t][i])].append((t, i))
    for t in range(4, 7):
        for i in range(4):
            dma[4 * (t - 4) + P["c4d"] + i].append((t, i))
    for n in range(28):
        for (t, i) in dma[n]:
            at(n, lambda t=t, i=i: chunk_part(t, i))
    pf = P["pflag"]
    at(pf, prep_flag)
    at(P["k_at"], kbuf_dma)
    at(P["g_ld"], gate_loads)
    gc = P["g_cmp"]
    at(gc, gate_dot); at(gc+1, gate_red1); at(gc+2, gate_red2); at(gc+3, gate_fin)
    assert gc + 3 < P["pchk"] and pf < P["poll_at"] < P["pchk"] < P["ua_at"] <= P["ub_at"] and P["ua_at"] >= 19
    at(P["poll_at"], prep_poll_issue)
    at(P["pchk"], prep_poll_check)
    at(16, act_base)
    at(max(pf + 1, 15), conv_addr)
    assert P["c4d"] + 11 < 18
    at(18, ubuf_prep)
    at(P["ua_at"], ubuf_a)
    at(P["ub_at"], ubuf_b)
    if P["fa_pre"]:
        assert P["mpre"] == 8
        at(39, act_flag)
    else:
        at(40 + P["fa_at"], act_flag)
    at(40 + P["ap_at"], act_poll_issue)
    assert min(w2cnt) >= 2

    def reads(n):
        t, ks = n >> 2, n & 3
        base = SA[t & 3]
        win = base >= 65536
        off = base - (65536 if win else 0)
        fb = FR + 12 * (n % 3)
        vb = (VBB if win else VBA) + ks
        va = VAB if win else VAA
        a(f"ds_read_b128 {vr(fb+8,4)}, v{vb} offset:{off}")
        for ft in range(2):
            for part in range(2):
                a(f"ds_read_b64_tr_b16 {vr(fb+4*ft+2*part,2)}, v{va+ft} offset:{off+16384+4096*ks+1024*part}")
        lg.issue(f"r{n}", 5)

    vm.wait("c0")
    lg.wait_all()
    a("s_barrier")
    stamp("g1s")
    reads(0)
    a(f"""
    ds_read_b64_tr_b16 {vr(T+24,2)}, v3
    ds_read_b64_tr_b16 {vr(T+26,2)}, v3 offset:512
    """)
    lg.issue("kvtr", 2)
    reads(1)
    for n in range(28):
        fb = FR + 12 * (n % 3)
        bar = ((n + 2) & 3) == 0 and n + 2 < 28
        lg.wait(f"r{n}")
        a(f"v_mfma_f32_32x32x16_bf16 {vr(ACC1,16)}, {vr(fb,4)}, {vr(fb+8,4)}, {vr(ACC1,16)}")
        if bar:
            t1 = (n + 2) >> 2
            lg.wait_all()
            vm.wait(f"c{t1}")
            a("s_barrier")
            stamp(f"n{n}", "g")
        if n + 2 < 28:
            reads(n + 2)
        a(f"v_mfma_f32_32x32x16_bf16 {vr(ACC1+16,16)}, {vr(fb+4,4)}, {vr(fb+8,4)}, {vr(ACC1+16,16)}")
        fire(n)
    stamp("g1e")

    MT = 24
    fill = []
    def mop(s, kind="v"):
        fill.append((s, kind))
    for grp in range(4):
        hb = ACC1 + 8 * grp
        for half in range(2):
            hs = [hb + 4 * half + e for e in range(4)]
            if P["pk"]:
                h0 = hs[0]
                E, U_ = MT, MT + 4
                for e in (0, 2):
                    mop(f"v_pk_mul_f32 {vr(E+e,2)}, {vr(h0+e,2)}, s[{S_LOG}:{S_LOG+1}] op_sel_hi:[1,0]")
                for e in range(4):
                    mop(f"v_exp_f32 v{E+e}, v{E+e}")
                for e in (0, 2):
                    mop(f"v_pk_fma_f32 {vr(U_+e,2)}, {vr(E+e,2)}, 0.5, 1.0 op_sel_hi:[1,0,0]")
                for e in (0, 2):
                    mop(f"v_pk_fma_f32 {vr(E+e,2)}, {vr(E+e,2)}, {vr(U_+e,2)}, 1.0 op_sel_hi:[1,1,0]")
                for e in range(4):
                    mop(f"v_rcp_f32 v{E+e}, v{E+e}")
                for e in (0, 2):
                    mop(f"v_pk_fma_f32 {vr(h0+e,2)}, {vr(h0+e,2)}, {vr(E+e,2)}, {vr(h0+e,2)} neg_lo:[1,0,0] neg_hi:[1,0,0]")
                continue
            for e in range(4):
                mop(f"v_mul_f32 v{MT+2*e}, s{S_LOG}, v{hs[e]}")
            for e in range(4):
                mop(f"v_exp_f32 v{MT+2*e}, v{MT+2*e}")
            for e in range(4):
                mop(f"v_fma_f32 v{MT+2*e+1}, v{MT+2*e}, 0.5, 1.0")
            for e in range(4):
                mop(f"v_fma_f32 v{MT+2*e}, v{MT+2*e}, v{MT+2*e+1}, 1.0")
            for e in range(4):
                mop(f"v_rcp_f32 v{MT+2*e}, v{MT+2*e}")
            for e in range(4):
                mop(f"v_fma_f32 v{hs[e]}, -v{hs[e]}, v{MT+2*e}, v{hs[e]}")
        for e2 in range(4):
            mop(f"v_cvt_pk_bf16_f32 v{hb+e2}, v{hb+2*e2}, v{hb+2*e2+1}")
        mop(f"buffer_store_dwordx4 {vr(hb,4)}, v{VL16}, {S(SRD_WS)}, s{S_AB} offen offset:{1024*grp} sc1", f"act{grp}")
    NMISH = len(fill)
    GL = NMISH // 4
    FRAG = {}
    VTMP = 5
    for sl in range(7):
        for dt in range(4):
            FRAG[(sl, dt)] = (64 if sl == 0 else W2R + 16 * (sl - 1)) + 4 * dt
    tdone = [0]
    def tblock():
        sl = tdone[0]
        tdone[0] += 1
        assert w2i[0] >= 4 * (sl + 1), "transpose before loads issued"
        B = W2R + 16 * sl
        vm.wait(f"w{sl}")
        a("s_mov_b32 vcc_lo, 0x00ff00ff\ns_mov_b32 vcc_hi, 0x00ff00ff")
        lo, hi = {}, {}
        dst = VTMP
        for j in range(4):
            for r in range(2):
                X, Y = B + 4 * j + r, B + 4 * j + r + 2
                a(f"v_cndmask_b32_dpp v{dst}, v{Y}, v{X}, vcc row_ror:8 row_mask:0xf bank_mask:0xf")
                a(f"v_mov_b32_dpp v{Y}, v{X} row_ror:8 row_mask:0xf bank_mask:0x3")
                lo[(j, r)] = dst; hi[(j, r)] = Y
                dst = X
        def src(i, r):
            return lo[(i, r)] if i < 4 else hi[(i - 4, r)]
        for jj in range(4):
            for r in range(2):
                for pp in range(2):
                    a(f"v_perm_b32 v{FRAG[(sl, 2*r+pp)]+jj}, v{src(2*jj+1, r)}, v{src(2*jj, r)}, s{S_PH if pp else S_PL}")
    TCV = [int(x) for x in P["tcv"].split(",")] if P["tcv"] else []

    ACC2 = 80
    VAL = 21
    S_AB1 = S_KC
    S_YD = S_KVO
    S_STX = S_WB
    SRD_ACT = SRD_QG
    TK = P["tailk"]
    ND = P["ndir"]
    assert 10 <= ND <= 10
    PIECES = [(sl, st) for sl in range(7 - TK) for st in range(4)] + [(sl, st) for st in range(4) for sl in range(7 - TK, 7)]
    RING = [24 + 4 * i for i in range(10)]
    SLOT = {i: RING[i % 10] for i in range(28)}
    def stg(k):
        return ("lo", 1024 * k) if k < 8 else (("hi", 1024 * (k - 8)) if k < 16 else ("x", 1024 * (k - 16)))
    def act_setup():
        assert mi[0] >= NMISH
        a(f"""
        v_lshrrev_b32 v2, 5, v1
        v_bfe_u32 v3, v1, 4, 1
        v_lshlrev_b32 v2, 10, v2
        v_lshl_add_u32 v2, v3, 9, v2
        v_and_b32 v3, 15, v1
        v_lshl_add_u32 v{VAL}, v3, 4, v2
        s_mul_i32 s{S_AB}, s{S_RT2}, {2*112}
        s_mul_i32 s{S_T0}, s{S_WAVE}, 14
        s_add_u32 s{S_AB}, s{S_AB}, s{S_T0}
        s_lshl_b32 s{S_AB}, s{S_AB}, 10
        s_add_u32 s{S_AB1}, s{S_AB}, {112*1024}
        s_lshl_b32 s{S_M0}, s{S_WAVE}, 13
        """)
        srd(SRD_ACT, "ws")
    acked = [0]
    def act_check():
        vm.wait("poll")
        stamp("apw", "2")
        a(f"""
        v_cmp_ne_u64 vcc, s[{S_NON}:{S_NON+1}], v[6:7]
        s_cmp_eq_u64 vcc, 0
        s_cselect_b32 s{SRD_ACT+2}, s{SRD_ACT+2}, 0
        """)
        acked[0] = 1
    nld = [0]
    def actload(i):
        sl, st = PIECES[i]
        a(f"""
        s_bfe_u32 s{S_T0}, s{S_TBL}, {(4 * sl) | (4 << 16)}
        s_lshl_b32 s{S_T0}, s{S_T0}, 11
        s_add_u32 s{S_T0}, s{S_T0}, s{S_AB1 if st >> 1 else S_AB}
        """)
        if i < ND:
            a(f"buffer_load_dwordx4 {vr(SLOT[i],4)}, v{VAL}, {S(SRD_ACT)}, s{S_T0} offen offset:{256*(st&1)} {P['mal']}")
        else:
            kind, off = stg(i - ND)
            if kind == "x":
                a(f"s_add_u32 m0, s{S_STX}, {off}")
            else:
                a(f"s_add_u32 m0, s{S_M0}, {off + (65536 if kind == 'hi' else 0)}")
            a(f"s_add_u32 s{S_T0}, s{S_T0}, {256*(st&1)}")
            a(f"buffer_load_dwordx4 v{VAL}, {S(SRD_ACT)}, s{S_T0} offen {P['mal']} lds")
        vm.issue(f"a{i}")
    def act_next(lim):
        assert acked[0]
        if nld[0] < lim:
            actload(nld[0])
            nld[0] += 1
    at(40 + P["ap_at"], act_setup)
    if P["ac_at"] < 72:
        assert P["ac_at"] > P["ap_at"]
        at(40 + P["ac_at"], act_check)
        for k in range(18):
            pt = P["ac_at"] + int(k * P["acs"] / 10)
            at(40 + min(pt, 71), lambda: act_next(18))

    mi = [0]
    def emit_fill(k, lim=None):
        lim = len(fill) if lim is None else lim
        while k > 0 and mi[0] < lim:
            s, kind = fill[mi[0]]
            a(s)
            k -= 1
            if kind != "v":
                vm.issue(kind)
            mi[0] += 1

    a("s_nop 7\ns_nop 7")
    for k in range(P["mpre"]):
        emit_fill((GL + 1) // 2 if k % 2 == 0 else GL // 2, NMISH)
        fire(28 + k)
    for pt in range(28 + P["mpre"], 40):
        fire(pt)
    vm.wait("K")
    lg.wait_all()
    stamp("cvb", "p")
    a("s_barrier")
    stamp("cvs")

    CACC = 124
    POOL = [100 + 4 * i for i in range(6)] + [80 + 4 * i for i in range(5)]
    RSETS = [[0, 1, 6, 7], [2, 3, 4, 5]]
    lab_rs1 = a.newlabel("L_cv_rs1")
    lab_join = a.newlabel("L_cv_join")
    a(f"""
    s_and_b32 s{S_T0}, s{S_WAVE}, 1
    s_cmp_eq_u32 s{S_T0}, 1
    s_cbranch_scc1 {lab_rs1}
    """)
    sv = (vm.save(), lg.save(), mi[0], nst[0], w2i[0], tdone[0], nld[0], acked[0])
    MPER = P["mper"]
    for rs in range(2):
        if rs == 1:
            a.label(lab_rs1)
            vm.load(sv[0]); lg.load(sv[1]); mi[0] = sv[2]; nst[0] = sv[3]; w2i[0] = sv[4]; tdone[0] = sv[5]; nld[0] = sv[6]; acked[0] = sv[7]
        rset = RSETS[rs]
        rmax = max(rset)
        seq = []
        for rp in range(4):
            order = range(rmax + 1) if rp % 2 == 0 else range(rmax, -1, -1)
            for b in order:
                for ri, r in enumerate(rset):
                    if r >= b:
                        seq.append((rp, ri, ("A", rp, b), ("B", rp, r - b)))
        last = {}
        firstorder = []
        for i, (rp, ri, fa, fbk) in enumerate(seq):
            for f in (fa, fbk):
                if f not in last:
                    firstorder.append(f)
                last[f] = i
        free = list(POOL)
        loc = {}
        nxt = [0]
        def issue_loads():
            while nxt[0] < len(firstorder) and free:
                f = firstorder[nxt[0]]
                reg = free.pop(0)
                loc[f] = reg
                if f[0] == "A":
                    a(f"ds_read_b128 {vr(reg,4)}, v{VA} offset:{64*(59-8*f[2]-f[1])}")
                else:
                    a(f"ds_read_b128 {vr(reg,4)}, v{VBk} offset:{64*(8*f[2]+3-f[1])}")
                lg.issue(f)
                nxt[0] += 1
        started = set()
        issue_loads()
        for i, (rp, ri, fa, fbk) in enumerate(seq):
            assert fa in loc and fbk in loc, (i, fa, fbk)
            lg.wait(fa); lg.wait(fbk)
            c = vr(CACC + 4 * ri, 4) if ri in started else "0"
            started.add(ri)
            a(f"v_mfma_f32_16x16x32_bf16 {vr(CACC+4*ri,4)}, {vr(loc[fa],4)}, {vr(loc[fbk],4)}, {c}")
            for f in (fa, fbk):
                if last[f] == i and loc[f] not in free:
                    free.append(loc[f])
            issue_loads()
            if mi[0] < NMISH:
                emit_fill(MPER, NMISH)
            for _ in range(TCV.count(i)):
                tblock()
            fire(40 + i)
        assert mi[0] >= NMISH
        for pt in range(40 + len(seq), 200):
            fire(pt)
        w2_emit(28)
        a(f"""
        s_bfe_u32 s{S_T2}, s{S_WAVE}, 0x10001
        s_cmp_eq_u32 s{S_T2}, 0
        s_cselect_b32 s{S_R0}, {rset[0]}, {rset[2]}
        s_cselect_b32 s{S_R1}, {rset[1]}, {rset[3]}
        """)
        if rs == 0:
            a(f"s_branch {lab_join}")
            end0 = (vm.save(), mi[0], w2i[0], nst[0])
        else:
            assert end0 == (vm.save(), mi[0], w2i[0], nst[0])
    a.label(lab_join)
    lg.alts = [["x"] * 15]
    stamp("cve")

    lab_cs1 = a.newlabel("L_cv_cs1")
    lab_j2 = a.newlabel("L_cv_j2")
    a(f"""
    s_lshl_b32 s{S_T3}, s{S_WAVE}, 11
    s_add_u32 s{S_T2}, s{S_T3}, {XB}
    v_add_u32 v4, s{S_T2}, v{VL16}
    s_xor_b32 s{S_T3}, s{S_T3}, 0x1000
    s_add_u32 s{S_T3}, s{S_T3}, {XB}
    v_add_u32 v3, s{S_T3}, v{VL16}
    s_bfe_u32 s{S_T2}, s{S_WAVE}, 0x10001
    s_cmp_eq_u32 s{S_T2}, 0
    s_cbranch_scc0 {lab_cs1}
    ds_write_b128 v3, {vr(CACC+8,4)}
    ds_write_b128 v3, {vr(CACC+12,4)} offset:1024
    s_branch {lab_j2}
    """)
    a.label(lab_cs1)
    a(f"""
    ds_write_b128 v3, {vr(CACC,4)}
    ds_write_b128 v3, {vr(CACC+4,4)} offset:1024
    s_nop 1
    """)
    for i in range(8):
        a(f"v_mov_b32 v{CACC+i}, v{CACC+8+i}")
    a.label(lab_j2)
    TT = 80
    a(f"""
    s_lshr_b32 s{S_T3}, s{S_WAVE}, 2
    s_mul_i32 s{S_T2}, s{S_T3}, {8*UP}
    s_add_u32 s{S_T2}, s{S_T2}, {UB + 7*UP + 4088}
    v_and_b32 v5, 15, v1
    v_lshrrev_b32 v11, 4, v1
    v_lshlrev_b32 v2, 5, v5
    v_lshl_add_u32 v2, v11, 3, v2
    v_sub_u32 v2, s{S_T2}, v2
    s_lshl_b32 s{S_T2}, s{S_R0}, 9
    v_subrev_u32 v12, s{S_T2}, v2
    s_lshl_b32 s{S_T2}, s{S_R1}, 9
    v_subrev_u32 v13, s{S_T2}, v2
    ds_read_b64 v[{TT+8}:{TT+9}], v12
    ds_read_b64 v[{TT+10}:{TT+11}], v13
    """)
    a(f"""
    s_mov_b32 s{S_YD}, 0
    s_lshl_b32 s{S_STX}, s{S_WAVE}, 11
    s_add_u32 s{S_STX}, s{S_STX}, {EXTRA}
    s_lshl_b32 s{S_T2}, s{S_D}, 16
    s_and_b32 s{S_T4}, s{S_D}, 0xffff0000
    s_cmp_eq_u32 s{S_T3}, 0
    s_cselect_b32 s{S_T4}, s{S_T2}, s{S_T4}
    v_mov_b32 v13, s{S_R0}
    v_mov_b32 v14, s{S_R1}
    v_and_b32 v15, 1, v11
    v_cmp_eq_u32 vcc, 0, v15
    v_lshrrev_b32 v15, 1, v11
    v_lshlrev_b32 v8, 5, v5
    v_cndmask_b32 v13, v14, v13, vcc
    v_lshl_add_u32 v8, v15, 4, v8
    v_lshl_add_u32 v8, v13, 9, v8
    s_lshl_b32 s{S_T2}, s2, 1
    s_add_u32 s{S_T2}, s{S_T2}, s{S_T3}
    s_lshl_b32 s{S_T5}, s{S_T2}, 2
    s_lshl_b32 s{S_T2}, s{S_T2}, 12
    s_add_u32 s{S_T2}, s{S_T2}, {WS_Y2T}
    s_waitcnt lgkmcnt(0)
    s_barrier
    ds_read_b128 {vr(TT,4)}, v4
    ds_read_b128 {vr(TT+4,4)}, v4 offset:1024
    """)
    lg.clear()
    lg.issue("xr", 2)
    R = 16
    for _ in range(P["apost"] if acked[0] else 0):
        act_next(28)
    for ri in range(2):
        kvr = TT + 8 + 2 * ri
        a(f"""
        v_and_b32 v{TT+16+4*ri}, 0xffff0000, v{kvr+1}
        v_lshlrev_b32 v{TT+17+4*ri}, 16, v{kvr+1}
        v_and_b32 v{TT+18+4*ri}, 0xffff0000, v{kvr}
        v_lshlrev_b32 v{TT+19+4*ri}, 16, v{kvr}
        """)
        for j in range(4):
            a(f"v_fmac_f32 v{CACC+4*ri+j}, s{S_T4}, v{TT+16+4*ri+j}")
    lg.wait("xr")
    for ri in range(2):
        for j in range(4):
            a(f"v_add_f32 v{CACC+4*ri+j}, v{CACC+4*ri+j}, v{TT+4*ri+j}")
        a(f"v_cvt_pk_bf16_f32 v{R+2*ri}, v{CACC+4*ri}, v{CACC+4*ri+1}")
        a(f"v_cvt_pk_bf16_f32 v{R+2*ri+1}, v{CACC+4*ri+2}, v{CACC+4*ri+3}")
    a(f"""
    s_nop 1
    v_permlane16_swap_b32 v{R}, v{R+2}
    v_permlane16_swap_b32 v{R+1}, v{R+3}
    s_and_b32 s{S_T0}, s{S_WAVE}, 3
    s_add_u32 s{S_T5}, s{S_T5}, s{S_T0}
    buffer_store_dwordx4 v[{R}:{R+3}], v8, {S(SRD_WS)}, s{S_T2} offen sc1
    s_lshl_b32 s{S_T5}, s{S_T5}, {FSH}
    s_add_u32 s{S_YF}, s{S_T5}, {FY}
    """)
    vm.issue("yst")
    stamp("yst", "2")

    def yflag():
        vm.wait("yst")
        flag_store("", S_YF)

    while tdone[0] < P["tpre"]:
        tblock()
    stamp("tpre", "2")
    if not acked[0]:
        act_check()
    lab_fast = a.newlabel("L_apfast")
    a(f"""
    s_cmp_lg_u32 s{SRD_ACT+2}, 0
    s_cbranch_scc1 {lab_fast}
    """)
    sv = vm.save()
    yflag()
    a(f"s_mov_b32 s{S_YD}, 1")
    poll_check(6, VPA, S_FA)
    a(f"s_mov_b32 s{SRD_ACT+2}, {WS_SIZE}")
    for i in range(nld[0]):
        actload(i)
    vm.merge(sv)
    a.label(lab_fast)
    stamp("apok")
    VSTG, VSTH, VSTX, VYW, VYA = 16, 17, 18, 19, 8
    VQ, VG, VOUT, VS = 12, 11, 9, 10
    VYD, VY8, VYRA, VYRB, VPR = 240, 244, 252, 253, 254

    def ypoll_issue():
        a(f"""
        s_lshr_b32 s{S_T0}, s{S_RT2}, 3
        s_lshl_b32 s{S_T0}, s{S_T0}, 2
        s_lshr_b32 s{S_T1}, 0x2310, s{S_T0}
        s_and_b32 s{S_T1}, s{S_T1}, 3
        s_lshl_b32 s{S_T0}, s{S_CT2}, 3
        s_add_u32 s{S_T0}, s{S_T0}, s{S_WAVE}
        s_lshl_b32 s{S_T2}, s{S_T0}, 15
        s_lshl_b32 s{S_T0}, s{S_T0}, 5
        s_add_u32 s{S_T0}, s{S_T0}, s{S_T1}
        s_lshl_b32 s{S_T0}, s{S_T0}, {FSH}
        s_add_u32 s{S_FA}, s{S_T0}, {FY}
        v_lshrrev_b32 v2, 3, v1
        v_lshlrev_b32 v{VPA}, {FSH+2}, v2
        buffer_load_dwordx2 v[6:7], v{VPA}, {S(SRD_WS)}, s{S_FA} offen sc1
        v_and_b32 v3, 7, v1
        v_lshlrev_b32 v{VYA}, 12, v2
        v_lshl_add_u32 v{VYA}, v3, 4, v{VYA}
        s_lshl_b32 s{S_T1}, s{S_RT2}, 7
        s_add_u32 s{S_T2}, s{S_T2}, s{S_T1}
        s_add_u32 s{S_YB}, s{S_T2}, {WS_Y2T}
        v_xor_b32 v3, s{S_WAVE}, v3
        v_lshlrev_b32 v3, 4, v3
        v_lshl_add_u32 v3, v2, 7, v3
        s_lshl_b32 s{S_T1}, s{S_WAVE}, 11
        s_add_u32 s{S_T1}, s{S_T1}, {XB}
        v_add_u32 v{VYW}, s{S_T1}, v3
        """)
        vm.issue("poll")

    def ep_loads():
        a(f"""
        s_lshr_b32 s{S_T0}, s{S_WAVE}, 1
        s_lshl_b32 s{S_T0}, s{S_T0}, 4
        s_and_b32 s{S_T1}, s{S_WAVE}, 1
        s_lshl_b32 s{S_T1}, s{S_T1}, 1
        s_add_u32 s{S_T0}, s{S_T0}, s{S_T1}
        s_lshl_b32 s{S_T1}, s{S_RT2}, 6
        v_bfe_u32 v2, v1, 3, 2
        v_lshrrev_b32 v3, 5, v1
        v_lshl_add_u32 v2, v2, 2, v3
        v_add_u32 v20, s{S_T0}, v2
        v_add_u32 v{VS}, s{S_T1}, v20
        v_mul_u32_u24 v2, 896, v{VS}
        v_bfe_u32 v3, v1, 1, 2
        v_lshl_add_u32 v2, v3, 5, v2
        v_and_b32 v3, 1, v1
        v_lshl_add_u32 v2, v3, 3, v2
        s_lshl_b32 s{S_T0}, s{S_CT2}, 7
        v_add_u32 v{VOUT}, s{S_T0}, v2
        v_lshlrev_b32 v{VG}, 2, v{VS}
        s_mov_b32 s{S_T2}, {WS_G}
        buffer_load_dwordx2 {vr(VQ,2)}, v{VOUT}, {S(SRD_Q)}, 0 offen
        buffer_load_dwordx2 {vr(VQ+2,2)}, v{VOUT}, {S(SRD_Q)}, 0 offen offset:16
        buffer_load_dword v{VG}, v{VG}, {S(SRD_WS)}, s{S_T2} offen sc1
        """)
        vm.issue("q", 3)


    def yflag_cond():
        l_skip = a.newlabel("L_yfs")
        a(f"""
        s_cmp_lg_u32 s{S_YD}, 0
        s_cbranch_scc1 {l_skip}
        """)
        sv = vm.save()
        yflag()
        vm.merge(sv)
        a.label(l_skip)
        stamp("yfl", "2")

    def ep_addr():
        a(f"""
        v_bfe_u32 v2, v1, 1, 2
        v_lshlrev_b32 v2, 1, v2
        v_lshrrev_b32 v3, 3, v20
        v_xor_b32 v3, v3, v2
        v_lshlrev_b32 v4, 11, v2
        v_and_b32 v5, 1, v1
        v_lshl_add_u32 v4, v5, 9, v4
        v_and_b32 v5, 7, v20
        v_lshl_add_u32 v4, v5, 1, v4
        v_add_u32 v4, {XB}, v4
        v_lshl_add_u32 v{VYRA}, v3, 4, v4
        v_xor_b32 v3, 1, v3
        v_lshl_add_u32 v{VYRB}, v3, 4, v4
        v_add_u32 v{VYRB}, 2048, v{VYRB}
        s_lshr_b32 s{S_T0}, s{S_WAVE}, 2
        s_lshl_b32 s{S_T0}, s{S_T0}, 16
        s_and_b32 s{S_T1}, s{S_WAVE}, 3
        s_lshl_b32 s{S_T1}, s{S_T1}, 11
        s_add_u32 s{S_T0}, s{S_T0}, s{S_T1}
        v_lshrrev_b32 v3, 5, v1
        v_lshlrev_b32 v3, 10, v3
        v_bfe_u32 v4, v1, 3, 2
        v_lshl_add_u32 v3, v4, 6, v3
        v_lshl_add_u32 v3, v2, 2, v3
        v_and_b32 v5, 1, v1
        v_lshl_add_u32 v3, v5, 5, v3
        v_add_u32 v{VPR}, s{S_T0}, v3
        """)
        for e in range(8):
            a(f"v_mov_b32 v{VY8+e}, 0")

    started2 = set()
    pw = []
    rd_done = set()
    def pwrite(reg):
        st, dt, j = reg >> 4, (reg >> 2) & 3, reg & 3
        row = (st * 4 + j) * 4 + dt
        for k in range(4 * st, 4 * st + 4):
            assert ND + k in rd_done, "partial write over unread staged piece"
        lo = row < 32
        if not pw or pw[-1] != lo:
            a(f"s_add_u32 m0, s{S_M0}, {0 if lo else 7940}")
            a("s_nop 0")
            pw.append(lo)
        off = row * 256 if lo else 57596 + (row - 32) * 256
        a(f"ds_write_addtid_b32 v{ACC2+reg} offset:{off}")
        lg.issue("pw")

    def stage_read(i):
        kind, off = stg(i - ND)
        vm.wait(f"a{i}")
        a(f"ds_read_b128 {vr(SLOT[i],4)}, v{dict(lo=VSTG, hi=VSTH, x=VSTX)[kind]} offset:{off}")
        lg.issue(f"s{i}")
        rd_done.add(i)

    def yload():
        a(f"buffer_load_dwordx4 {vr(VYD,4)}, v{VYA}, {S(SRD_WS)}, s{S_YB} offen sc1")
        vm.issue("y")

    def ycheck_fast():
        vm.wait("poll")
        stamp("ypw", "2")
        l_skip = a.newlabel("L_ycs")
        a(f"""
        v_cmp_ne_u64 vcc, s[{S_NON}:{S_NON+1}], v[6:7]
        s_mov_b32 s{S_YD}, 0
        s_cmp_lg_u64 vcc, 0
        s_cbranch_scc1 {l_skip}
        s_mov_b32 s{S_YD}, 1
        """)
        sv = vm.save()
        yload()
        vm.merge(sv)
        a.label(l_skip)

    pend_w = []
    LAG = P["lag"]
    IL = P["il"]
    nrd = [ND]
    a(f"""
    v_lshlrev_b32 v2, 4, v1
    v_add_u32 v{VSTG}, s{S_M0}, v2
    v_add_u32 v{VSTH}, 0x10000, v{VSTG}
    v_add_u32 v{VSTX}, s{S_STX}, v2
    """)
    def process(i):
        sl, st = PIECES[i]
        while tdone[0] <= sl:
            tblock()
            a("s_nop 1")
        if i >= ND - 1:
            while nrd[0] < 28 and nrd[0] <= i + LAG and nrd[0] - 10 < i and nrd[0] < nld[0]:
                stage_read(nrd[0]); nrd[0] += 1
        if i < ND:
            vm.wait(f"a{i}")
        else:
            assert i in rd_done
            lg.wait(f"s{i}")
        if i in (0, 4, 9, 12, 16, 20, 24, 27):
            stamp(f"a{i}", "2")
        for dt in range(4):
            ac = ACC2 + 16 * st + 4 * dt
            c = vr(ac, 4) if (st, dt) in started2 else "0"
            started2.add((st, dt))
            a(f"v_mfma_f32_16x16x32_bf16 {vr(ac,4)}, {vr(SLOT[i],4)}, {vr(FRAG[(sl,dt)],4)}, {c}")
            for _ in range(P["pwper"]):
                if pend_w and (dt >= 2 or pend_w[0][1] < i - 1):
                    pwrite(pend_w.pop(0)[0])
        if i == P["yc_at"]:
            while tdone[0] < 7:
                tblock()
                a("s_nop 1")
            ycheck_fast()
        if sl == 6:
            for r in range(16):
                pend_w.append((16 * st + r, i))
    epa = [0]
    TBI = [int(x) for x in P["tbi"].split(",")] if P["tbi"] else []
    for j in range(28 + IL):
        if j == P["yp_at"]:
            ypoll_issue()
        if j < 28 and j >= nld[0]:
            act_next(28)
        if j == P["yf_at"]:
            yflag_cond()
        if j == P["epl_at"]:
            ep_loads()
        for _ in range(TBI.count(j)):
            if tdone[0] < 7:
                tblock()
                a("s_nop 1")
        if j >= P["ep_at"] and tdone[0] == 7 and not epa[0]:
            ep_addr()
            epa[0] = 1
        if j == 27:
            stamp("ald", "2")
        if j == IL:
            stamp("g2s")
        if j >= IL:
            process(j - IL)
    assert P["yc_at"] < 28 and P["yp_at"] <= P["yc_at"] + IL and P["epl_at"] < P["ep_at"] and P["yf_at"] < P["yc_at"] + IL
    assert epa[0]
    stamp("g2e")
    l_yok = a.newlabel("L_yok")
    a(f"""
    s_cmp_lg_u32 s{S_YD}, 0
    s_cbranch_scc1 {l_yok}
    """)
    sv = vm.save()
    poll_check(6, VPA, S_FA)
    yload()
    vm.merge(sv)
    a.label(l_yok)
    a("s_nop 3")
    while pend_w:
        pwrite(pend_w.pop(0)[0])
    VOMG = 10
    vm.wait("q")
    GQ = 24 + 64
    GQ = 144
    a(f"""
    v_sub_f32 v{VOMG}, 1.0, v{VG}
    v_cvt_pk_bf16_f32 v{VOMG}, v{VOMG}, v{VOMG}
    v_lshlrev_b32 v{VOMG}, 16, v{VOMG}
    """)
    for d in range(4):
        a(f"""
        v_lshlrev_b32 v{GQ+2*d}, 16, v{VQ+d}
        v_and_b32 v{GQ+2*d+1}, 0xffff0000, v{VQ+d}
        """)
    vm.wait("y")
    stamp("yw", "2")
    a(f"ds_write_b128 v{VYW}, {vr(VYD,4)}")
    lg.wait_all()
    stamp("fb", "2")
    a("s_barrier")
    stamp("fin")
    for e in range(8):
        a(f"ds_read_u16_d16_hi v{VY8+e}, v{VYRA if e < 4 else VYRB} offset:{128*(e&3)}")
    lg.issue("yr", 8)
    RD = 24
    for wv in range(8):
        for dt in range(4):
            a(f"ds_read_b64 {vr(RD+8*wv+2*dt,2)}, v{VPR} offset:{dt*256 + wv*8192}")
            lg.issue(f"pr{wv}")
        if wv == 1:
            lg.wait("yr")
            for e in range(8):
                a(f"v_mul_f32 v{GQ+e}, v{GQ+e}, v{VY8+e}")
            for e in range(8):
                a(f"v_mul_f32 v{GQ+e}, v{GQ+e}, v{VG}")
        if wv >= 3:
            w1_ = wv - 2
            lg.wait(f"pr{w1_}")
            for e in range(0, 8, 2):
                a(f"v_pk_add_f32 {vr(RD+e,2)}, {vr(RD+e,2)}, {vr(RD+8*w1_+e,2)}")
    for wv in range(6, 8):
        lg.wait(f"pr{wv}")
        for e in range(0, 8, 2):
            a(f"v_pk_add_f32 {vr(RD+e,2)}, {vr(RD+e,2)}, {vr(RD+8*wv+e,2)}")
    for e in range(8):
        a(f"v_fmac_f32 v{GQ+e}, v{VOMG}, v{RD + 2*(e&3) + (e>>2)}")
    for e in range(4):
        a(f"v_cvt_pk_bf16_f32 v{VQ+e}, v{GQ+2*e}, v{GQ+2*e+1}")
    a(f"""
    buffer_store_dwordx2 {vr(VQ,2)}, v{VOUT}, {S(SRD_OUT)}, 0 offen
    buffer_store_dwordx2 {vr(VQ+2,2)}, v{VOUT}, {S(SRD_OUT)}, 0 offen offset:16
    """)
    if stamps:
        stamp("st")
        a("s_waitcnt vmcnt(0)")
        stamp("end")
        a(f"""
        s_memrealtime s[{S_TM}:{S_TM+1}]
        s_waitcnt lgkmcnt(0)
        v_writelane_b32 v{VST}, s{S_TM}, 30
        """)
        a(f"""
        s_lshl_b32 s{S_T0}, s2, 3
        s_add_u32 s{S_T0}, s{S_T0}, s{S_WAVE}
        s_lshl_b32 s{S_T0}, s{S_T0}, 7
        s_add_u32 s{S_T0}, s{S_T0}, {WS_STAMP}
        v_lshlrev_b32 v2, 2, v1
        v_cmp_gt_u32 vcc, 32, v1
        v_mov_b32 v3, {OOB}
        s_nop 1
        v_cndmask_b32 v2, v3, v2, vcc
        buffer_store_dword v{VST}, v2, {S(SRD_WS)}, s{S_T0} offen
        """)
    a.label("L_end")
    a("s_endpgm")
    hdr = f"; @launch grid=({NWG},1,1) block=(512,1,1) lds={LDS_END}\n"
    if stamps:
        hdr += "; STAMPS " + " ".join(f"{names[i]}" for i in range(len(names))) + "\n"
    out = hdr + '.amdgcn_target "amdgcn-amd-amdhsa--gfx950"\n.text\n' + a.text()
    out += '.section .rodata,"a"\n' + kd(NAME, 256)
    return out


P.update(plag=8, pper=4, pwper=2)

if __name__ == "__main__":
    st = "stamps" in sys.argv[2:]
    for x in sys.argv[2:]:
        if "=" in x:
            k, v = x.split("=")
            assert k in P, k
            P[k] = v if isinstance(P[k], str) else int(v)
    open(sys.argv[1], "w").write(gen(st))
```

```python
import sys
sys.path.insert(0, "dev")
from genlib import vr, sr, kd

NAME = "gated_mix__ssm_conv_h3__dense_activation_mish__prompt_kernel"
NWG = 224
NH = 32
WS_ACT = 0
WS_KVT = 8 << 20
WS_Y2T = 10 << 20
WS_G = 12 << 20
WS_W2T = 13 << 20
WS_FLAG = 15 << 20
FP = WS_FLAG
FA = WS_FLAG + (256 << 10)
FY = WS_FLAG + (512 << 10)
FH = WS_FLAG + (768 << 10)
FW = WS_FLAG + (832 << 10)
WS_STAMP = 16 << 20
WS_SIZE = 32 << 20

S_WAVE = 3
S_T0, S_T1, S_T2, S_T3, S_T4, S_T5 = 4, 5, 6, 7, 8, 9
S_RB, S_CB, S_RBK, S_CG, S_RT2, S_CT2 = 10, 11, 12, 13, 14, 15
PTR = dict(q=16, k=18, v=20, sh=22, sk=24, sd=26, bx=28, w1=30, b1=32, w2=34, gw=36, out=38, dbg=40, ws=42)
SRD_Q, SRD_K, SRD_V, SRD_SH, SRD_W1, SRD_B1, SRD_ACT, SRD_WS = 44, 48, 52, 56, 60, 64, 68, 72
SRD_SK, SRD_W2, SRD_OUT, SRD_DBG = 76, 80, 84, 88
SRD_GW = SRD_ACT
S_SOX, S_SOW, S_KC, S_CQ, S_CW = 92, 93, 94, 95, 28
S_CQ2, S_CW2 = 39, 66
S_NON = 96
S_TM = 98
S_D = 100
S_M0 = 101
S_PL, S_PH, S_LOG, S_SPIN, S_MSK = 16, 17, 18, 19, 20
S_KVO, S_FPO, S_FAO, S_FYO, S_KUO, S_KM0, S_KSO = 22, 23, 24, 25, 26, 27, 29
S_AB, S_STG, S_STX, S_YSO, S_YLO, S_DV, S_YD, S_TBL, S_R0 = 30, 31, 32, 33, 34, 35, 36, 37, 38
S_CMP = 40
ASL = [48, 49, 50, 51, 52, 53, 54]
WSL = [80, 81, 82, 83, 64, 65, 67]
SIZE = dict(q=2048*448*2, k=2048*448*2, v=2048*448*2, sh=448*4*2, sk=448*2048*2, sd=448*2, w1=448*1792*2,
            b1=1792*2, w2=1792*448*2, gw=448*2, out=2048*448*2, ws=WS_SIZE, dbg=256)
OOB = 0x7fff0000

SA = [98304, 0, 32768, 65536]
UB = 65536
UP = 4160
CP = 8 * UP + 64
KB = 132160
KT = 141376
LT = 150592
LSM = 158784
LDS_END = 163840
XB = 147456
EXTRA = 131072

VA, VBk, VL16, VW2G, VPAA, VAL, VSTX, VXW, VKR1, VSPARE, VYS, VPAY, VYA, VYW, VOUT, VST = range(8, 24)
VGA, VYRA, VPR, VSTG, VFL, VAL2, VNV = 24, 25, 26, 27, 28, 29, 30
ACC1 = 32
FR = 64
W = 100
Bq, Cq, Dq = 108, 114, 120
VKR, VWR, VLTW, VLTR, VKS, VPAP, VU0, VU1, VPO, VPT = 108, 109, 110, 111, 112, 113, 114, 115, 116, 118
VPW, VPO2 = VW2G, 120
VXE, VXO, VWO, VBA, VBB, VAA, VAB, VT1, VUW, VPAD = 126, 127, 128, 129, 133, 137, 139, 141, 142, 143
W2R = 144
PX = 64
VK, VV, VW, T = 192, 208, 212, 228
MT = 80

P = dict(sleep=2, nt=1, cs="0000,0011,0011", c4d=2, kv_at=0, fpre=0, kvbar=0, ltbar=6, b1=4, b2=8, pflag=13, poll_at=20, pchk=26,
         np_at=10, wchk=13,
         k_at=14, w2p="14-35:1,40-110/2:1", ua_at=35, ub_at=36, rv="0010", pro="c0,bl,kva,srd,kv,c1,g1,bias,prep,flags,kz,tbl,w2a,c2",
         fa_at=4, ap_at=40, ac_at=54, acs=10, apost=2, cper=30, cst=0, il=20, yf_at=24, yp_at=30, yc_at=18, epl_at=22,
         tailk=2, lag=3, pwper=2, mal="sc1", st="b,g", xp="", htlb=1, mo=1, g2per=2, cpf=1, ntc=0, nth=1, map=0, hmap=1,
         mu="sc1", my="sc1", mw="sc1", hdel=0)


class Asm:
    def __init__(self):
        self.lines = []
        self.nlab = 0
        self.rec = None
    def __call__(self, s):
        for ln in s.strip("\n").split("\n"):
            ln = ln.strip()
            if ln:
                if self.rec is not None:
                    self.rec.append(("line", ln))
                else:
                    self.lines.append("    " + ln)
    def label(self, l):
        assert self.rec is None, "labels not allowed in recorded fillers"
        self.lines.append(l + ":")
    def newlabel(self, p="L"):
        self.nlab += 1
        return f"{p}_{self.nlab}"
    def raw(self, s):
        self.lines.append(s)
    def text(self):
        return "\n".join(self.lines) + "\n"


class Cnt:
    def __init__(self, a, name, cap):
        self.a, self.name, self.cap = a, name, cap
        self.alts = [[]]
    def issue(self, tag, n=1):
        if self.a.rec is not None:
            self.a.rec.append(("post", lambda: self.issue(tag, n)))
            return
        for q in self.alts:
            q.extend([tag] * n)
    def wait(self, tag):
        if self.a.rec is not None:
            self.a.rec.append(("pre", lambda: self.wait(tag)))
            return
        ns = []
        for q in self.alts:
            if tag in q:
                idx = max(i for i, t in enumerate(q) if t == tag)
                ns.append(len(q) - 1 - idx)
        if not ns:
            return
        n = min(min(ns), self.cap)
        self.a(f"s_waitcnt {self.name}({n})")
        self.alts = [q[len(q) - n:] if n and len(q) > n else (q if n else []) for q in self.alts]
        self.dedup()
    def dedup(self):
        u = []
        for q in self.alts:
            if q not in u:
                u.append(q)
        self.alts = u
    def wait_all(self):
        assert self.a.rec is None
        self.a(f"s_waitcnt {self.name}(0)")
        self.alts = [[]]
    def clear(self):
        self.alts = [[]]
    def save(self):
        return [list(q) for q in self.alts]
    def load(self, s):
        self.alts = [list(q) for q in s]
    def merge(self, s):
        self.alts = self.alts + [list(q) for q in s]
        self.dedup()


class FQ:
    def __init__(self, a):
        self.a = a
        self.q = []
    def push(self, f, tag=None, gate=None, hard=False):
        a = self.a
        assert a.rec is None
        a.rec = []
        f()
        items, a.rec = a.rec, None
        atoms = []
        cur = []
        glue = None
        pend = []
        for it in items:
            if it[0] == "pre":
                pend.append(it)
                continue
            if it[0] == "post":
                (cur if cur else atoms[-1]).append(it)
                continue
            ln = it[1]
            op = ln.split()[0]
            if cur and glue is None:
                atoms.append(cur); cur = []
            cur.extend(pend); pend = []
            cur.append(it)
            if glue == "scc" and op.startswith(("s_cselect", "s_cbranch", "s_addc", "s_subb")):
                glue = None
            elif glue == "m0" and (" lds" in ln or "addtid" in ln):
                glue = None
            elif glue == "exec" and ln.replace(" ", "") == "s_mov_b64exec,-1":
                glue = None
            elif glue == "nop":
                glue = None
            if glue is None:
                if op.startswith(("s_cmp", "s_bitcmp")):
                    glue = "scc"
                elif " m0," in ln:
                    glue = "m0"
                elif op == "s_mov_b64" and "exec," in ln.replace(" ", "") and not ln.replace(" ", "").endswith("-1"):
                    glue = "exec"
                elif op == "s_nop":
                    glue = "nop"
        assert glue is None and not pend, (glue, pend)
        if cur:
            atoms.append(cur)
        for i, at_ in enumerate(atoms):
            self.q.append(dict(items=at_, cost=sum(1 for x in at_ if x[0] == "line"), gate=gate if i == 0 else None, hard=hard,
                               tag=tag if i == len(atoms) - 1 else None))
    def _emit1(self):
        at_ = self.q.pop(0)
        if at_["hard"] and at_["gate"] is not None:
            assert at_["gate"](), "hard gate violated"
        for k, v in at_["items"]:
            if k == "line":
                self.a(v)
            else:
                v()
        return at_
    def emit(self, budget):
        while budget > 0 and self.q:
            g = self.q[0]["gate"]
            if g is not None and not g():
                return
            budget -= self._emit1()["cost"]
    def drain(self, tag=None):
        if tag is not None and not any(x["tag"] == tag for x in self.q):
            return
        while self.q:
            if self._emit1()["tag"] == tag and tag is not None:
                return
    def save(self):
        return list(self.q)
    def load(self, s):
        self.q = list(s)


def gen(stamps=False):
    a = Asm()
    vm = Cnt(a, "vmcnt", 62)
    lg = Cnt(a, "lgkmcnt", 15)
    fq = FQ(a)
    nst = [0]
    names = {}
    STS = set(P["st"].split(","))
    XP = set(P["xp"].split(",")) if P["xp"] else set()

    def stamp(name, grp="b"):
        if not stamps or grp not in STS:
            return
        assert a.rec is None
        assert nst[0] < 30
        a(f"""
        s_memtime s[{S_TM}:{S_TM+1}]
        s_waitcnt lgkmcnt(0)
        v_writelane_b32 v{VST}, s{S_TM}, {nst[0]}
        """)
        lg.clear()
        names[nst[0]] = name
        nst[0] += 1

    def srd(dst, name):
        p = PTR[name]
        a(f"""
        s_mov_b32 s{dst}, s{p}
        s_and_b32 s{dst+1}, s{p+1}, 0xffff
        s_mov_b32 s{dst+2}, {SIZE[name]}
        s_mov_b32 s{dst+3}, 0x00020000
        """)

    def S(x):
        return f"s[{x}:{x+3}]"

    def poll_check(vflag, vaddr):
        l_ok = a.newlabel("L_pok")
        l_re = a.newlabel("L_pre")
        def test():
            a(f"v_cmp_ne_u64 s[{S_CMP}:{S_CMP+1}], s[{S_NON}:{S_NON+1}], v[{vflag}:{vflag+1}]")
            a(f"s_cmp_lg_u64 s[{S_CMP}:{S_CMP+1}], 0")
        test()
        a(f"s_cbranch_scc0 {l_ok}")
        a.label(l_re)
        a(f"""
        s_cmp_eq_u32 s{S_SPIN}, 0
        s_cbranch_scc1 {l_ok}
        s_sub_u32 s{S_SPIN}, s{S_SPIN}, 1
        s_sleep {P["sleep"]}
        buffer_load_dwordx2 v[{vflag}:{vflag+1}], v{vaddr}, {S(SRD_WS)}, 0 offen sc1
        s_waitcnt vmcnt(0)
        """)
        test()
        a(f"s_cbranch_scc1 {l_re}")
        a.label(l_ok)

    def nonce_load():
        a(f"buffer_load_dwordx2 v[{VNV}:{VNV+1}], off, {S(SRD_DBG)}, 0 sc1")
        vm.issue("non")

    def nonce_check():
        vm.wait("non")
        l_ok = a.newlabel("L_nok")
        l_re = a.newlabel("L_nre")
        a(f"""
        v_readfirstlane_b32 s{S_NON}, v{VNV}
        v_readfirstlane_b32 s{S_NON+1}, v{VNV+1}
        s_cmp_lg_u32 s{S_NON}, 0
        s_cbranch_scc1 {l_ok}
        """)
        a.label(l_re)
        a(f"""
        s_cmp_eq_u32 s{S_SPIN}, 0
        s_cbranch_scc1 {l_ok}
        s_sub_u32 s{S_SPIN}, s{S_SPIN}, 1
        s_sleep {P["sleep"]}
        buffer_load_dwordx2 v[{VNV}:{VNV+1}], off, {S(SRD_DBG)}, 0 sc1
        s_waitcnt vmcnt(0)
        v_readfirstlane_b32 s{S_NON}, v{VNV}
        v_readfirstlane_b32 s{S_NON+1}, v{VNV+1}
        s_cmp_eq_u32 s{S_NON}, 0
        s_cbranch_scc1 {l_re}
        """)
        a.label(l_ok)

    def flag_store(sreg):
        a(f"buffer_store_dwordx2 v[{VNV}:{VNV+1}], v{VFL}, {S(SRD_WS)}, s{sreg} offen sc1")
        vm.issue("flag")

    def vfl_setup():
        a(f"""
        v_cmp_gt_u32 vcc, 16, v1
        v_mov_b32 v4, {OOB}
        v_lshlrev_b32 v5, 3, v1
        v_cndmask_b32 v{VFL}, v4, v5, vcc
        """)

    def stamp_init():
        if stamps:
            a(f"""
            v_mov_b32 v{VST}, 0
            s_memrealtime s[{S_TM}:{S_TM+1}]
            s_waitcnt lgkmcnt(0)
            v_writelane_b32 v{VST}, s{S_TM}, 31
            """)

    a.raw(f".globl {NAME}\n.p2align 8\n.type {NAME},@function")
    a.label(NAME)
    NT = " nt" if P["nt"] else ""
    NTQ = " nt" if P["ntc"] & 1 else ""
    NTW1 = " nt" if P["ntc"] & 2 else ""
    NTH = " nt" if P["nth"] & 1 else ""
    NTG = " nt" if P["nth"] & 2 else ""
    a(f"""
    s_cmp_ge_u32 s2, {NWG + NH}
    s_cbranch_scc1 L_end
    s_load_dwordx16 s[16:31], s[0:1], 0
    s_load_dwordx8 s[32:39], s[0:1], 64
    s_load_dwordx4 s[40:43], s[0:1], 96
    """)
    if P["cpf"]:
        a(f"s_getpc_b64 s[{S_TM}:{S_TM+1}]")
        a.label("L_pc")
        a(f"""
        s_lshr_b32 s{S_T0}, s2, 3
        s_lshl_b32 s{S_T0}, s{S_T0}, 11
        s_and_b32 s{S_T0}, s{S_T0}, 0x7fff
        v_lshl_add_u32 v3, v0, 2, s{S_T0}
        v_min_u32 v3, L_codeend-L_pc-4, v3
        global_load_dword v{VPT+1}, v3, s[{S_TM}:{S_TM+1}]
        """)
        vm.issue("cpf")
    a(f"""
    v_lshrrev_b32 v2, 6, v0
    v_and_b32 v1, 63, v0
    s_and_b32 s{S_T0}, s2, 7
    v_readfirstlane_b32 s{S_WAVE}, v2
    s_cmp_ge_u32 s2, {NWG}
    s_cbranch_scc1 L_helper
    s_lshr_b32 s{S_T1}, s2, 3
    s_mul_i32 s{S_T2}, s{S_T1}, 9363
    s_lshr_b32 s{S_T2}, s{S_T2}, 16
    s_mul_i32 s{S_T3}, s{S_T2}, 7
    s_sub_u32 s{S_CT2}, s{S_T1}, s{S_T3}
    s_lshr_b32 s{S_T5}, s{S_T0}, 1
    """)
    if P["map"] == 0:
        a(f"""
        s_lshl_b32 s{S_RB}, s{S_T5}, 2
        s_add_u32 s{S_RB}, s{S_RB}, s{S_T2}
        s_and_b32 s{S_T1}, s{S_T0}, 1
        s_mul_i32 s{S_CB}, s{S_T1}, 7
        s_add_u32 s{S_CB}, s{S_CB}, s{S_CT2}
        s_lshl_b32 s{S_RT2}, s{S_RB}, 1
        s_add_u32 s{S_RT2}, s{S_RT2}, s{S_T1}
        """)
    else:
        a(f"""
        s_lshl_b32 s{S_RT2}, s{S_T0}, 2
        s_add_u32 s{S_RT2}, s{S_RT2}, s{S_T2}
        s_lshr_b32 s{S_RB}, s{S_RT2}, 1
        s_and_b32 s{S_T1}, s{S_T2}, 1
        s_mul_i32 s{S_CB}, s{S_T1}, 7
        s_add_u32 s{S_CB}, s{S_CB}, s{S_CT2}
        s_and_b32 s{S_T1}, s{S_T0}, 1
        """)
    RA, RB_, RC, RD_ = [int(c) for c in P["rv"]]
    a(f"""
    s_mul_i32 s{S_T4}, s{S_T2}, {RB_}
    s_mul_i32 s{S_T3}, s{S_CT2}, {RA}
    s_add_u32 s{S_T4}, s{S_T4}, s{S_T3}
    s_mul_i32 s{S_T5}, s{S_T5}, {RC}
    s_add_u32 s{S_T4}, s{S_T4}, s{S_T5}
    s_mul_i32 s{S_T5}, s{S_T1}, {RD_}
    s_add_u32 s{S_T4}, s{S_T4}, s{S_T5}
    s_mul_i32 s{S_T5}, s{S_T4}, 9363
    s_lshr_b32 s{S_T5}, s{S_T5}, 16
    s_mul_i32 s{S_T5}, s{S_T5}, 7
    s_sub_u32 s{S_KC}, s{S_T4}, s{S_T5}
    s_mul_i32 s{S_SOX}, s{S_RB}, {128*896}
    s_lshl_b32 s{S_SOW}, s{S_CB}, 8
    v_lshrrev_b32 v2, 3, v1
    s_lshl_b32 s{S_T0}, s{S_WAVE}, 4
    v_add_u32 v2, s{S_T0}, v2
    v_mul_u32_u24 v2, 896, v2
    v_and_b32 v3, 7, v1
    v_lshrrev_b32 v4, 4, v1
    v_xor_b32 v3, v3, v4
    v_lshl_add_u32 v{VXE}, v3, 4, v2
    v_xor_b32 v3, 4, v3
    v_lshl_add_u32 v{VXO}, v3, 4, v2
    v_add_u32 v{VXO}, {8*896}, v{VXO}
    s_lshl_b32 s{S_T0}, s{S_WAVE}, 3
    v_add_u32 v2, s{S_T0}, v4
    v_mul_u32_u24 v2, 3584, v2
    v_and_b32 v3, 15, v1
    v_lshlrev_b32 v5, 2, v4
    v_xor_b32 v3, v3, v5
    v_lshl_add_u32 v{VWO}, v3, 4, v2
    s_lshl_b32 s{S_M0}, s{S_WAVE}, 11
    s_lshr_b32 s{S_CG}, s2, 5
    s_and_b32 s{S_RBK}, s2, 31
    v_lshlrev_b32 v{VL16}, 4, v1
    s_waitcnt lgkmcnt(0)
    """)
    stamp_init()
    stamp("ka")

    cp_seq = [0]
    def chunk_part(t, i):
        assert 4 * t + i == cp_seq[0], ("chunk order", t, i)
        cp_seq[0] += 1
        st = SA[t & 3]
        tag = f"c{t}"
        if i == 0:
            a(f"""
            s_lshl_b32 s{S_CQ}, s{S_KC}, 7
            s_add_u32 m0, s{S_M0}, {st}
            s_add_u32 s{S_CQ}, s{S_CQ}, s{S_SOX}
            s_mul_i32 s{S_CW}, s{S_KC}, {64*3584}
            buffer_load_dwordx4 v{VXE}, {S(SRD_Q)}, s{S_CQ} offen{NTQ} lds
            s_add_u32 s{S_CW}, s{S_CW}, s{S_SOW}
            s_add_u32 s{S_KC}, s{S_KC}, 1
            s_cmp_eq_u32 s{S_KC}, 7
            s_cselect_b32 s{S_KC}, 0, s{S_KC}
            """)
        elif i == 1:
            a(f"""
            s_add_u32 m0, s{S_M0}, {st+16384}
            s_nop 0
            buffer_load_dwordx4 v{VWO}, {S(SRD_W1)}, s{S_CW} offen{NTW1} lds
            s_add_u32 s{S_CW}, s{S_CW}, {4*3584}
            """)
        elif i == 2:
            a(f"""
            s_add_u32 m0, s{S_M0}, {st+1024}
            s_nop 0
            buffer_load_dwordx4 v{VXO}, {S(SRD_Q)}, s{S_CQ} offen{NTQ} lds
            """)
        else:
            a(f"""
            s_add_u32 m0, s{S_M0}, {st+16384+1024}
            s_nop 0
            buffer_load_dwordx4 v{VWO}, {S(SRD_W1)}, s{S_CW} offen{NTW1} lds
            """)
        vm.issue(tag, 1)

    done = set()
    VKA, VOB, VHA = T, T + 1, T + 2
    def ad_kva():
        a(f"""
        v_and_b32 v2, 7, v0
        v_lshrrev_b32 v3, 3, v0
        s_lshl_b32 s{S_T0}, s{S_RBK}, 6
        v_add_u32 v3, s{S_T0}, v3
        v_mul_u32_u24 v3, 896, v3
        v_lshl_add_u32 v{VKA}, v2, 4, v3
        v_mov_b32 v{VOB}, {OOB}
        s_cmp_eq_u32 s{S_RBK}, 0
        s_cselect_b64 vcc, 0, -1
        v_subrev_u32 v{VHA}, {8*896}, v{VKA}
        v_cndmask_b32 v{VHA}, v{VOB}, v{VHA}, vcc
        """)
        done.add("kva")

    def kv_loads():
        assert "kva" in done and "srd" in done and "aload" not in done
        l_skip = a.newlabel("L_sm"); l1 = a.newlabel("L_sm1")
        a(f"""
        s_lshl_b32 s{S_CQ2}, s{S_CG}, 7
        s_cmp_ge_u32 s{S_WAVE}, 2
        s_cbranch_scc1 {l_skip}
        s_cmp_eq_u32 s{S_WAVE}, 1
        s_cbranch_scc1 {l1}
        s_mov_b32 m0, {KT}
        s_nop 0
        buffer_load_dwordx4 v{VHA}, {S(SRD_K)}, s{S_CQ2} offen lds
        s_branch {l_skip}
        """)
        a.label(l1)
        a(f"""
        s_mov_b32 m0, {LSM}
        s_lshl_b32 s{S_CW2}, s{S_CG}, 9
        buffer_load_dwordx4 v{VL16}, {S(SRD_SH)}, s{S_CW2} offen lds
        """)
        a.label(l_skip)
        a(f"""
        s_lshl_b32 s{S_CW2}, s{S_WAVE}, 10
        s_add_u32 m0, s{S_CW2}, {KT + 1024}
        s_nop 0
        buffer_load_dwordx4 v{VKA}, {S(SRD_K)}, s{S_CQ2} offen{NT} lds
        buffer_load_dwordx4 {vr(VV,4)}, v{VKA}, {S(SRD_V)}, s{S_CQ2} offen{NT}
        """)
        vm.issue("kv0", 2)
        done.add("kv")

    def bias_loads():
        srd(SRD_B1, "b1")
        a(f"""
        v_cmp_gt_u32 vcc, 32, v1
        v_lshlrev_b32 v2, 1, v1
        v_mov_b32 v3, {OOB}
        s_and_b32 s{S_T0}, s{S_WAVE}, 1
        s_lshl_b32 s{S_T0}, s{S_T0}, 7
        v_cndmask_b32 v2, v3, v2, vcc
        s_add_u32 s{S_T0}, s{S_T0}, s{S_SOW}
        buffer_load_ushort v88, v2, {S(SRD_B1)}, s{S_T0} offen
        buffer_load_ushort v92, v2, {S(SRD_B1)}, s{S_T0} offen offset:64
        """)
        vm.issue("bias", 2)
        done.add("bl")

    def srds():
        assert "bl" in done
        a(f"""
        s_lshl_b32 s{S_T0}, s2, 2
        s_load_dword s{S_D}, s[{PTR['sd']}:{PTR['sd']+1}], s{S_T0}
        """)
        srd(SRD_K, "k"); srd(SRD_V, "v"); srd(SRD_SH, "sh")
        srd(SRD_WS, "ws"); srd(SRD_SK, "sk"); srd(SRD_OUT, "out"); srd(SRD_DBG, "dbg"); srd(SRD_ACT, "ws")
        a(f"""
        s_mov_b32 s{S_SPIN}, 20000
        s_or_b32 s{S_T0}, s2, s{S_WAVE}
        s_cmp_lg_u32 s{S_T0}, 0
        s_cbranch_scc1 L_nononce
        s_memrealtime s[{S_NON}:{S_NON+1}]
        s_waitcnt lgkmcnt(0)
        s_or_b32 s{S_NON}, s{S_NON}, 1
        v_mov_b32 v2, s{S_NON}
        v_mov_b32 v3, s{S_NON+1}
        v_lshlrev_b32 v4, 8, v1
        buffer_store_dwordx2 v[2:3], v4, {S(SRD_DBG)}, 0 offen sc1
        """)
        a.label("L_nononce")
        done.add("srd")

    CS = ["P"] + P["cs"].split(",")
    srd(SRD_Q, "q"); srd(SRD_W1, "w1")

    def ad_flags():
        a(f"""
        s_mul_i32 s{S_T0}, s{S_RB}, 28
        s_lshl_b32 s{S_T1}, s{S_CB}, 1
        s_add_u32 s{S_T0}, s{S_T0}, s{S_T1}
        s_and_b32 s{S_T1}, s{S_WAVE}, 1
        s_add_u32 s{S_T0}, s{S_T0}, s{S_T1}
        s_lshl_b32 s{S_T0}, s{S_T0}, 2
        s_lshr_b32 s{S_T1}, s{S_WAVE}, 1
        s_add_u32 s{S_T0}, s{S_T0}, s{S_T1}
        s_lshl_b32 s{S_T0}, s{S_T0}, 7
        s_add_u32 s{S_FAO}, s{S_T0}, {FA}
        v_mov_b32 v2, {OOB}
        s_lshl_b32 s{S_T1}, s2, 3
        v_writelane_b32 v2, s{S_FAO}, 0
        s_add_u32 s{S_T1}, s{S_T1}, s{S_WAVE}
        s_lshl_b32 s{S_T1}, s{S_T1}, 7
        s_add_u32 s{S_FYO}, s{S_T1}, {FY}
        v_writelane_b32 v2, s{S_FYO}, 1
        s_add_u32 s{S_FPO}, s{S_T1}, {FP}
        v_writelane_b32 v2, s{S_FPO}, 2
        buffer_load_dword v{VPT}, v2, {S(SRD_WS)}, 0 offen sc1
        """)
        vm.issue("pt")
        vfl_setup()

    def ad_tbl():
        a(f"""
        s_and_b32 s{S_T0}, s{S_RT2 if P["map"] else S_RB}, 3
        s_add_u32 s{S_T0}, s{S_T0}, s{S_CT2}
        s_mul_i32 s{S_T1}, s{S_T0}, 11
        s_lshr_b32 s{S_T1}, s{S_T1}, 5
        s_mul_i32 s{S_T1}, s{S_T1}, 3
        s_sub_u32 s{S_T1}, s{S_T0}, s{S_T1}
        s_and_b32 s{S_T0}, s{S_T0}, 3
        s_lshl_b32 s{S_T0}, s{S_T0}, 2
        s_lshl_b32 s{S_T1}, s{S_T1}, 2
        s_lshr_b32 s{S_T0}, 0x64206420, s{S_T0}
        s_and_b32 s{S_T0}, s{S_T0}, 0xffff
        s_lshr_b32 s{S_T1}, 0x531531, s{S_T1}
        s_and_b32 s{S_T1}, s{S_T1}, 0xfff
        s_lshl_b32 s{S_T2}, s{S_T1}, 16
        s_or_b32 s{S_T2}, s{S_T2}, s{S_T0}
        s_lshl_b32 s{S_T3}, s{S_T0}, 12
        s_or_b32 s{S_T3}, s{S_T3}, s{S_T1}
        s_bitcmp1_b32 s{S_WAVE}, 0
        s_cselect_b32 s{S_TBL}, s{S_T3}, s{S_T2}
        """)

    def ad_g1():
        a(f"""
        s_lshr_b32 s{S_T0}, s{S_WAVE}, 1
        s_lshl_b32 s{S_T0}, s{S_T0}, 5
        v_and_b32 v2, 31, v1
        v_add_u32 v2, s{S_T0}, v2
        v_lshrrev_b32 v3, 5, v1
        v_bfe_u32 v4, v2, 1, 3
        v_xor_b32 v3, v3, v4
        v_lshlrev_b32 v3, 4, v3
        v_lshl_add_u32 v{VBA}, v2, 7, v3
        v_xor_b32 v{VBA+1}, 32, v{VBA}
        v_xor_b32 v{VBA+2}, 64, v{VBA}
        v_xor_b32 v{VBA+3}, 0x60, v{VBA}
        v_add_u32 v{VBB}, 0x10000, v{VBA}
        v_add_u32 v{VBB+1}, 0x10000, v{VBA+1}
        v_add_u32 v{VBB+2}, 0x10000, v{VBA+2}
        v_add_u32 v{VBB+3}, 0x10000, v{VBA+3}
        v_bfe_u32 v2, v1, 4, 1
        v_lshrrev_b32 v3, 5, v1
        v_bfe_u32 v4, v1, 2, 2
        v_and_b32 v5, 3, v1
        v_lshl_add_u32 v6, v3, 3, v4
        v_lshlrev_b32 v6, 8, v6
        s_and_b32 s{S_T0}, s{S_WAVE}, 1
        s_lshl_b32 s{S_T0}, s{S_T0}, 3
        v_lshl_add_u32 v2, v2, 1, s{S_T0}
        v_lshrrev_b32 v3, 1, v5
        v_add_u32 v2, v2, v3
        v_lshlrev_b32 v3, 2, v4
        v_xor_b32 v2, v2, v3
        v_lshl_add_u32 v6, v2, 4, v6
        v_and_b32 v5, 1, v5
        v_lshl_add_u32 v{VAA}, v5, 3, v6
        v_xor_b32 v{VAA+1}, 64, v{VAA}
        v_add_u32 v{VAB}, 0x10000, v{VAA}
        v_add_u32 v{VAB+1}, 0x10000, v{VAA+1}
        """)

    def ad_bias():
        a(f"""
        v_mov_b32 v89, 0
        v_mov_b32 v90, 0
        v_mov_b32 v91, 0
        v_mov_b32 v93, 0
        v_mov_b32 v94, 0x3f80
        v_mov_b32 v95, 0
        v_mov_b32 v96, 0x3f80
        v_mov_b32 v97, 0
        """)

    def ad_w2a():
        a(f"""
        s_mul_i32 s{S_T1}, s{S_WAVE}, 7
        s_mul_i32 s{S_T0}, s{S_CT2}, 56
        s_add_u32 s{S_T1}, s{S_T1}, s{S_T0}
        s_add_u32 s{S_T2}, s{S_T1}, {FW >> 7}
        v_min_u32 v2, 6, v1
        v_add_u32 v2, s{S_T2}, v2
        v_lshlrev_b32 v{VPW}, 7, v2
        s_lshl_b32 s{S_T1}, s{S_T1}, 12
        s_add_u32 s{S_T1}, s{S_T1}, {WS_W2T}
        """)
        for sl in range(7):
            a(f"""
            s_bfe_u32 s{S_T0}, s{S_TBL}, {(4 * sl) | (4 << 16)}
            s_lshl_b32 s{S_T0}, s{S_T0}, 12
            s_add_u32 s{WSL[sl]}, s{S_T0}, s{S_T1}
            """)

    def ad_kz():
        a(f"""
        v_mov_b32 v4, 0
        v_mov_b32 v5, 0
        v_mov_b32 v6, 0
        v_mov_b32 v7, 0
        v_min_u32 v2, 29, v1
        v_lshlrev_b32 v2, 4, v2
        v_add_u32 v2, {KB}, v2
        ds_write_b128 v2, v[4:7]
        ds_write_b128 v2, v[4:7] offset:4608
        """)
        lg.issue("z", 2)

    def ad_prep():
        a(f"""
        s_mov_b32 s{S_PL}, 0x05040100
        s_mov_b32 s{S_PH}, 0x07060302
        v_lshlrev_b32 v2, 4, v0
        v_add_u32 v{VKR}, {KT + 1024 - 384}, v2
        v_and_b32 v3, 7, v0
        v_lshlrev_b32 v4, 6, v3
        v_add_u32 v{VWR}, {LSM}, v4
        v_lshrrev_b32 v2, 3, v0
        v_sub_u32 v2, 63, v2
        v_bfe_u32 v4, v2, 1, 1
        v_bfe_u32 v5, v2, 3, 2
        v_lshl_add_u32 v4, v5, 1, v4
        v_xor_b32 v3, v3, v4
        v_lshlrev_b32 v3, 4, v3
        v_lshl_add_u32 v2, v2, 7, v3
        v_add_u32 v{VLTW}, {LT}, v2
        """)
        a(f"""
        v_bfe_u32 v2, v1, 2, 2
        v_and_b32 v3, 3, v1
        v_lshl_add_u32 v4, v3, 3, v2
        v_lshrrev_b32 v2, 1, v2
        v_lshl_add_u32 v2, v3, 1, v2
        s_and_b32 s{S_T1}, s{S_WAVE}, 3
        s_lshl_b32 s{S_T2}, s{S_T1}, 1
        v_lshrrev_b32 v3, 5, v1
        v_add_u32 v3, s{S_T2}, v3
        v_xor_b32 v2, v2, v3
        v_lshlrev_b32 v2, 4, v2
        v_lshl_add_u32 v2, v4, 7, v2
        v_bfe_u32 v3, v1, 4, 1
        v_lshl_add_u32 v2, v3, 3, v2
        s_lshr_b32 s{S_T0}, s{S_WAVE}, 2
        s_lshl_b32 s{S_T2}, s{S_T0}, 12
        s_add_u32 s{S_T2}, s{S_T2}, {LT}
        v_add_u32 v{VLTR}, s{S_T2}, v2
        v_lshrrev_b32 v2, 4, v1
        v_bfe_u32 v3, v1, 1, 1
        v_lshl_add_u32 v2, v2, 1, v3
        v_bfe_u32 v3, v1, 2, 2
        v_and_b32 v4, 1, v1
        v_lshl_add_u32 v3, v3, 1, v4
        v_lshlrev_b32 v3, 4, v3
        v_lshl_add_u32 v{VKS}, v2, 13, v3
        s_lshl_b32 s{S_T2}, s{S_CG}, 2
        s_add_u32 s{S_T2}, s{S_T2}, s{S_T1}
        s_lshl_b32 s{S_T2}, s{S_T2}, 16
        s_lshl_b32 s{S_T0}, s{S_T0}, 7
        s_add_u32 s{S_T2}, s{S_T2}, s{S_T0}
        s_lshl_b32 s{S_T0}, s{S_RBK}, 8
        s_sub_u32 s{S_T2}, s{S_T2}, s{S_T0}
        s_add_u32 s{S_KVO}, s{S_T2}, {WS_KVT + 248*32}
        """)

    def ad_poll():
        a(f"""
        s_lshl_b32 s{S_T0}, s{S_WAVE}, 2
        s_sub_u32 s{S_T0}, 31, s{S_T0}
        v_lshrrev_b32 v2, 1, v1
        v_min_u32 v2, 4, v2
        v_sub_u32 v2, s{S_T0}, v2
        v_max_i32 v2, 0, v2
        v_and_b32 v3, 1, v1
        v_lshlrev_b32 v3, 2, v3
        v_lshl_add_u32 v2, v2, 3, v3
        s_lshl_b32 s{S_T1}, s{S_CG}, 8
        s_lshr_b32 s{S_T2}, s{S_RBK}, 3
        s_add_u32 s{S_T1}, s{S_T1}, s{S_T2}
        s_lshl_b32 s{S_T1}, s{S_T1}, 7
        s_add_u32 s{S_T1}, s{S_T1}, {FP}
        v_lshl_add_u32 v{VPAP}, v2, 7, s{S_T1}
        v_lshrrev_b32 v2, 1, v0
        v_and_b32 v3, 1, v0
        v_lshlrev_b32 v{VU0}, 4, v0
        v_cmp_ne_u32 vcc, 255, v2
        v_add_u32 v4, 32, v{VU0}
        v_mov_b32 v5, {OOB}
        v_cndmask_b32 v{VU1}, v5, v4, vcc
        s_lshl_b32 s{S_T0}, s2, 13
        s_add_u32 s{S_KUO}, s{S_T0}, {WS_KVT}
        v_mul_u32_u24 v3, {CP}, v3
        v_lshl_add_u32 v2, v2, 4, v3
        v_add_u32 v{VUW}, {UB}, v2
        s_lshr_b32 s{S_T1}, s{S_WAVE}, 2
        s_and_b32 s{S_T2}, s{S_WAVE}, 3
        s_mul_i32 s{S_T3}, s{S_T1}, {CP}
        s_mul_i32 s{S_T0}, s{S_T2}, {2*UP}
        s_add_u32 s{S_T3}, s{S_T3}, s{S_T0}
        s_add_u32 s{S_T3}, s{S_T3}, {UB + 4096}
        v_and_b32 v2, 1, v1
        v_mul_u32_u24 v2, {UP}, v2
        v_add_u32 v{VPAD}, s{S_T3}, v2
        """)

    def ad_k():
        a(f"""
        s_lshr_b32 s{S_T1}, s{S_WAVE}, 2
        s_and_b32 s{S_T2}, s{S_WAVE}, 3
        s_mul_i32 s{S_T3}, s{S_T1}, 4608
        s_lshl_b32 s{S_T2}, s{S_T2}, 10
        s_add_u32 s{S_T3}, s{S_T3}, s{S_T2}
        s_add_u32 s{S_KM0}, s{S_T3}, {KB + 480}
        s_lshl_b32 s{S_T0}, s2, 13
        s_lshl_b32 s{S_T3}, s{S_WAVE}, 10
        s_add_u32 s{S_KSO}, s{S_T0}, s{S_T3}
        """)

    def ad_conv():
        a(f"""
        s_lshr_b32 s{S_T1}, s{S_WAVE}, 2
        s_bfe_u32 s{S_T2}, s{S_WAVE}, 0x10001
        s_sub_u32 s{S_T2}, 1, s{S_T2}
        s_lshl_b32 s{S_T2}, s{S_T2}, 8
        s_mul_i32 s{S_T3}, s{S_T1}, {CP}
        s_add_u32 s{S_T3}, s{S_T3}, s{S_T2}
        s_add_u32 s{S_T3}, s{S_T3}, {UB + 16}
        v_and_b32 v2, 7, v1
        v_mul_u32_u24 v2, {UP}, v2
        v_bfe_u32 v3, v1, 3, 1
        v_lshrrev_b32 v4, 4, v1
        v_sub_u32 v3, v4, v3
        v_lshlrev_b32 v3, 4, v3
        v_add3_u32 v{VA}, v2, v3, s{S_T3}
        s_mul_i32 s{S_T3}, s{S_T1}, 4608
        s_add_u32 s{S_T3}, s{S_T3}, s{S_T2}
        s_add_u32 s{S_T3}, s{S_T3}, {KB}
        v_and_b32 v2, 15, v1
        v_lshlrev_b32 v2, 5, v2
        v_lshl_add_u32 v2, v4, 4, v2
        v_add_u32 v{VBk}, s{S_T3}, v2
        """)

    def ad_act():
        a(f"""
        s_lshr_b32 s{S_T0}, s{S_WAVE}, 1
        s_lshl_b32 s{S_T1}, s{S_RB}, 2
        s_add_u32 s{S_T0}, s{S_T0}, s{S_T1}
        s_mul_i32 s{S_T0}, s{S_T0}, 112
        s_lshl_b32 s{S_T1}, s{S_CB}, 3
        s_add_u32 s{S_T0}, s{S_T0}, s{S_T1}
        s_and_b32 s{S_T1}, s{S_WAVE}, 1
        s_lshl_b32 s{S_T1}, s{S_T1}, 2
        s_add_u32 s{S_T0}, s{S_T0}, s{S_T1}
        s_lshl_b32 s{S_AB}, s{S_T0}, 10
        s_mov_b32 s{S_LOG}, 0x3fb8aa3b
        """)

    def ad_apoll():
        a(f"""
        s_mul_i32 s{S_T0}, s{S_WAVE}, 14
        s_add_u32 s{S_T1}, s{S_T0}, 13
        s_lshr_b32 s{S_T0}, s{S_T0}, 2
        s_lshr_b32 s{S_T1}, s{S_T1}, 2
        v_bfe_u32 v2, v1, 1, 4
        v_add_u32 v2, s{S_T0}, v2
        v_min_u32 v2, s{S_T1}, v2
        v_and_b32 v3, 1, v1
        v_lshl_add_u32 v2, v2, 2, v3
        s_lshr_b32 s{S_T2}, s{S_RT2}, 1
        s_mul_i32 s{S_T2}, s{S_T2}, {28*4}
        s_and_b32 s{S_T1}, s{S_RT2}, 1
        s_lshl_b32 s{S_T1}, s{S_T1}, 1
        s_add_u32 s{S_T2}, s{S_T2}, s{S_T1}
        s_add_u32 s{S_T2}, s{S_T2}, {FA >> 7}
        v_add_u32 v2, s{S_T2}, v2
        s_lshl_b32 s{S_T0}, s{S_RT2}, 3
        s_and_b32 s{S_T1}, s{S_WAVE}, 6
        s_add_u32 s{S_T0}, s{S_T0}, s{S_T1}
        s_add_u32 s{S_T0}, s{S_T0}, {FH >> 7}
        v_cmp_gt_u32 vcc, 32, v1
        v_add_u32 v3, s{S_T0}, v3
        s_nop 0
        v_cndmask_b32 v2, v3, v2, vcc
        v_lshlrev_b32 v{VPAA}, 7, v2
        """)

    def ad_aload():
        a(f"""
        v_lshrrev_b32 v2, 5, v1
        v_bfe_u32 v3, v1, 4, 1
        v_lshlrev_b32 v2, 10, v2
        v_lshl_add_u32 v2, v3, 9, v2
        v_and_b32 v3, 15, v1
        v_lshl_add_u32 v{VAL}, v3, 4, v2
        v_add_u32 v{VAL2}, {112*1024}, v{VAL}
        s_mul_i32 s{S_T1}, s{S_RT2}, {2*112}
        s_mul_i32 s{S_T0}, s{S_WAVE}, 14
        s_add_u32 s{S_T1}, s{S_T1}, s{S_T0}
        s_lshl_b32 s{S_T1}, s{S_T1}, 10
        s_lshl_b32 s{S_STG}, s{S_WAVE}, 13
        s_lshl_b32 s{S_STX}, s{S_WAVE}, 11
        s_add_u32 s{S_STX}, s{S_STX}, {EXTRA}
        v_add_u32 v{VSTG}, s{S_STG}, v{VL16}
        v_add_u32 v{VSTX}, s{S_STX}, v{VL16}
        v_xor_b32 v2, 0x1000, v{VSTX}
        v_add_u32 v{VXW}, {XB - EXTRA}, v2
        """)
        for sl in range(7):
            a(f"""
            s_bfe_u32 s{S_T0}, s{S_TBL}, {(4 * sl) | (4 << 16)}
            s_lshl_b32 s{S_T0}, s{S_T0}, 11
            s_add_u32 s{ASL[sl]}, s{S_T0}, s{S_T1}
            """)

    def ad_tail():
        a(f"""
        s_and_b32 s{S_T0}, s{S_WAVE}, 3
        s_lshl_b32 s{S_T0}, s{S_T0}, 2
        s_lshr_b32 s{S_R0}, 0x4620, s{S_T0}
        s_and_b32 s{S_R0}, s{S_R0}, 15
        s_lshl_b32 s{S_R0}, s{S_R0}, 9
        s_lshr_b32 s{S_T3}, s{S_WAVE}, 2
        s_mul_i32 s{S_T2}, s{S_T3}, {CP}
        s_add_u32 s{S_T2}, s{S_T2}, {UB + 7*UP + 4088 - 512}
        s_sub_u32 s{S_T2}, s{S_T2}, s{S_R0}
        v_and_b32 v5, 15, v1
        v_lshrrev_b32 v4, 4, v1
        v_lshlrev_b32 v5, 5, v5
        v_lshl_add_u32 v2, v4, 3, v5
        v_sub_u32 v{VKR1}, s{S_T2}, v2
        v_lshrrev_b32 v2, 5, v1
        v_lshl_add_u32 v5, v2, 4, v5
        v_and_b32 v4, 1, v4
        v_lshl_add_u32 v{VYS}, v4, 9, v5
        s_lshl_b32 s{S_T2}, s2, 1
        s_add_u32 s{S_T2}, s{S_T2}, s{S_T3}
        s_lshl_b32 s{S_T2}, s{S_T2}, 12
        s_add_u32 s{S_T2}, s{S_T2}, s{S_R0}
        s_add_u32 s{S_YSO}, s{S_T2}, {WS_Y2T}
        s_lshl_b32 s{S_T2}, s{S_D}, 16
        s_and_b32 s{S_T4}, s{S_D}, 0xffff0000
        s_cmp_eq_u32 s{S_T3}, 0
        s_cselect_b32 s{S_DV}, s{S_T2}, s{S_T4}
        s_mov_b32 s{S_YD}, 0
        """)

    def ad_y():
        a(f"""
        s_lshr_b32 s{S_T0}, s{S_RT2}, 3
        s_lshl_b32 s{S_T0}, s{S_T0}, 2
        s_lshr_b32 s{S_T1}, 0x2310, s{S_T0}
        s_and_b32 s{S_T1}, s{S_T1}, 3
        s_lshl_b32 s{S_T0}, s{S_CT2}, 3
        s_add_u32 s{S_T0}, s{S_T0}, s{S_WAVE}
        s_lshl_b32 s{S_T2}, s{S_T0}, 15
        s_lshl_b32 s{S_T0}, s{S_T0}, 5
        s_add_u32 s{S_T0}, s{S_T0}, s{S_T1}
        s_lshl_b32 s{S_T0}, s{S_T0}, 7
        s_add_u32 s{S_T0}, s{S_T0}, {FY}
        v_lshrrev_b32 v2, 3, v1
        v_lshl_add_u32 v{VPAY}, v2, 9, s{S_T0}
        v_and_b32 v3, 7, v1
        v_lshlrev_b32 v4, 12, v2
        v_lshl_add_u32 v{VYA}, v3, 4, v4
        s_lshl_b32 s{S_T1}, s{S_RT2}, 7
        s_add_u32 s{S_T2}, s{S_T2}, s{S_T1}
        s_add_u32 s{S_YLO}, s{S_T2}, {WS_Y2T}
        v_xor_b32 v3, s{S_WAVE}, v3
        v_lshlrev_b32 v3, 4, v3
        v_lshl_add_u32 v3, v2, 7, v3
        s_lshl_b32 s{S_T1}, s{S_WAVE}, 11
        s_add_u32 s{S_T1}, s{S_T1}, {XB}
        v_add_u32 v{VYW}, s{S_T1}, v3
        """)

    def ad_ep():
        a(f"""
        s_lshr_b32 s{S_T0}, s{S_WAVE}, 1
        s_lshl_b32 s{S_T0}, s{S_T0}, 4
        s_and_b32 s{S_T1}, s{S_WAVE}, 1
        s_lshl_b32 s{S_T1}, s{S_T1}, 1
        s_add_u32 s{S_T0}, s{S_T0}, s{S_T1}
        s_lshl_b32 s{S_T1}, s{S_RT2}, 6
        v_bfe_u32 v2, v1, 3, 2
        v_lshrrev_b32 v3, 5, v1
        v_lshl_add_u32 v2, v2, 2, v3
        v_add_u32 v6, s{S_T0}, v2
        v_add_u32 v4, s{S_T1}, v6
        v_mul_u32_u24 v2, 896, v4
        v_bfe_u32 v3, v1, 1, 2
        v_lshl_add_u32 v2, v3, 5, v2
        v_and_b32 v5, 1, v1
        v_lshl_add_u32 v2, v5, 3, v2
        s_lshl_b32 s{S_T0}, s{S_CT2}, 7
        v_add_u32 v{VOUT}, s{S_T0}, v2
        v_lshlrev_b32 v4, 2, v4
        v_add_u32 v{VGA}, {WS_G}, v4
        v_lshlrev_b32 v2, 1, v3
        v_lshrrev_b32 v3, 3, v6
        v_xor_b32 v3, v3, v2
        v_lshlrev_b32 v4, 11, v2
        v_lshl_add_u32 v4, v5, 9, v4
        v_and_b32 v6, 7, v6
        v_lshl_add_u32 v4, v6, 1, v4
        v_add_u32 v4, {XB}, v4
        v_lshl_add_u32 v{VYRA}, v3, 4, v4
        s_lshr_b32 s{S_T0}, s{S_WAVE}, 2
        s_lshl_b32 s{S_T0}, s{S_T0}, 16
        s_and_b32 s{S_T1}, s{S_WAVE}, 3
        s_lshl_b32 s{S_T1}, s{S_T1}, 11
        s_add_u32 s{S_T0}, s{S_T0}, s{S_T1}
        v_lshrrev_b32 v3, 5, v1
        v_lshlrev_b32 v3, 10, v3
        v_bfe_u32 v4, v1, 3, 2
        v_lshl_add_u32 v3, v4, 6, v3
        v_lshl_add_u32 v3, v2, 2, v3
        v_lshl_add_u32 v3, v5, 5, v3
        v_add_u32 v{VPR}, s{S_T0}, v3
        """)

    ADS = dict(g1=ad_g1, bias=ad_bias, prep=ad_prep, flags=ad_flags, kz=ad_kz, tbl=ad_tbl, w2a=ad_w2a, k=ad_k, poll=ad_poll,
               act=ad_act, conv=ad_conv, apoll=ad_apoll, aload=ad_aload, tail=ad_tail, y=ad_y, ep=ad_ep)
    ADS0 = dict(ADS)
    def mk(nm):
        def f():
            assert nm in ("g1", "bias", "kz") or "srd" in done, nm
            if nm == "w2a":
                assert "tbl" in done
            ADS0[nm]()
            done.add(nm)
        return f
    ADS = {nm: mk(nm) for nm in ADS0}
    PRO = P["pro"].split(",")
    assert PRO[0] == "c0"
    SPEC = dict(kv=kv_loads, kva=ad_kva, bl=bias_loads, srd=srds)
    for nm in PRO:
        if nm in ("c0", "c1", "c2", "c3"):
            for i in range(4):
                chunk_part(int(nm[1:]), i)
        elif nm == "w0":
            vm.wait("c0")
        elif nm == "s":
            stamp(f"p{nst[0]}", "q")
        elif nm in SPEC:
            SPEC[nm]()
        else:
            ADS[nm]()
    for nm in ("g1", "bias", "srd", "bl", "kva"):
        assert nm in done, nm
    stamp("pro", "q")
    vm.wait("c0")
    stamp("c0", "q")
    vm.wait("bias")
    stamp("bi", "q")
    a(f"""
    v_mfma_f32_32x32x16_bf16 {vr(ACC1,16)}, v[88:91], v[94:97], 0
    v_mfma_f32_32x32x16_bf16 {vr(ACC1+16,16)}, v[90:93], v[94:97], 0
    """)

    w2cnt = {}
    for it in P["w2p"].split(","):
        rng, c = it.split(":")
        lo, hi = (rng.split("-") + [rng])[:2] if "-" in rng else (rng, rng)
        step = 1
        if "/" in hi:
            hi, step = hi.split("/")
        for pt in range(int(lo), int(hi) + 1, int(step)):
            w2cnt[pt] = w2cnt.get(pt, 0) + int(c)
    w2i = [0]
    cur = [0]
    FRAG = {(sl, dt): W2R + 16 * sl + 4 * dt for sl in range(7) for dt in range(4)}
    def w2_emit(n):
        for _ in range(n):
            k = w2i[0]
            if k >= 28 or "w2ok" not in done:
                return
            sl, j = k >> 2, k & 3
            if sl >= 3 and "kvst" not in done:
                return
            w2i[0] += 1
            a(f"buffer_load_dwordx4 {vr(FRAG[(sl, j)],4)}, v{VL16}, {S(SRD_WS)}, s{WSL[sl]} offen offset:{1024*j} {P['mw']}")
            vm.issue(f"w{sl}")

    EV = {}
    def at(pt, f):
        EV.setdefault(pt, []).append(f)
    def fire(pt):
        cur[0] = pt
        n0 = len(a.lines)
        for f in EV.get(pt, []):
            f()
        w2_emit(w2cnt.get(pt, 0))
        return len(a.lines) - n0

    def prep_a():
        for j in range(4):
            a(f"ds_read_b128 {vr(VK+4*j,4)}, v{VKR} offset:{384-128*j}")
            lg.issue("kr")
    def prep_b():
        for j in range(4):
            a(f"ds_read_b128 {vr(VW+4*j,4)}, v{VWR} offset:{16*j}")
            lg.issue("wr")
    def prep_c():
        lg.wait("kr")
        for d in range(4):
            t = T + 4 * d
            a(f"""
            v_perm_b32 v{t}, v{VK+4+d}, v{VK+d}, s{S_PL}
            v_perm_b32 v{t+1}, v{VK+4+d}, v{VK+d}, s{S_PH}
            v_perm_b32 v{t+2}, v{VK+12+d}, v{VK+8+d}, s{S_PL}
            v_perm_b32 v{t+3}, v{VK+12+d}, v{VK+8+d}, s{S_PH}
            """)
        lg.wait("wr")
        for d in range(4):
            t = T + 4 * d
            c0, c1 = 2*d, 2*d+1
            a(f"""
            v_dot2_f32_bf16 v{VK+2*d}, v{t}, v{VW+2*c0}, 0
            v_dot2_f32_bf16 v{VK+2*d+1}, v{t+1}, v{VW+2*c1}, 0
            """)
        for d in range(4):
            t = T + 4 * d
            c0, c1 = 2*d, 2*d+1
            a(f"""
            v_dot2_f32_bf16 v{VK+2*d}, v{t+2}, v{VW+2*c0+1}, v{VK+2*d}
            v_dot2_f32_bf16 v{VK+2*d+1}, v{t+3}, v{VW+2*c1+1}, v{VK+2*d+1}
            """)
        for d in range(4):
            a(f"""
            v_lshlrev_b32 v{VK+8+2*d}, 16, v{VV+d}
            v_and_b32 v{VK+9+2*d}, 0xffff0000, v{VV+d}
            """)
        for d in range(8):
            a(f"v_mul_f32 v{VK+d}, v{VK+d}, v{VK+8+d}")
        for d in range(4):
            a(f"v_cvt_pk_bf16_f32 v{T+20+d}, v{VK+2*d}, v{VK+2*d+1}")
        a(f"ds_write_b128 v{VLTW}, {vr(T+20,4)}")
        lg.issue("tw")

    def kvt_read():
        a(f"""
        ds_read_b64_tr_b16 {vr(T+24,2)}, v{VLTR}
        ds_read_b64_tr_b16 {vr(T+26,2)}, v{VLTR} offset:512
        """)
        lg.issue("kvtr", 2)
    def kvt_store():
        lg.wait("kvtr")
        a(f"buffer_store_dwordx4 {vr(T+24,4)}, v{VKS}, {S(SRD_WS)}, s{S_KVO} offen sc1")
        vm.issue("pst")
        nonce_load1()
        done.add("kvst")

    def nonce_load1():
        if "nl" not in done:
            nonce_load()
            done.add("nl")
    def nonce_check1():
        if "nc" not in done:
            nonce_check()
            done.add("nc")

    def w2_poll_issue():
        fq.drain("w2a")
        nonce_load1()
        a(f"buffer_load_dwordx2 v[{VPO2}:{VPO2+1}], v{VPW}, {S(SRD_WS)}, 0 offen sc1")
        vm.issue("wpoll")

    def w2_poll_check():
        nonce_check1()
        vm.wait("wpoll")
        stamp("wpw", "p")
        poll_check(VPO2, VPW)
        stamp("wpok", "p")
        done.add("w2ok")

    def prep_flag():
        fq.drain("flags")
        nonce_check1()
        vm.wait("pst")
        stamp("pflag", "p")
        flag_store(S_FPO)

    def kbuf_dma():
        fq.drain("k")
        a(f"""
        s_mov_b32 m0, s{S_KM0}
        s_nop 0
        buffer_load_dwordx4 v{VL16}, {S(SRD_SK)}, s{S_KSO} offen{NT} lds
        """)
        vm.issue("K")

    def prep_poll_issue():
        fq.drain("poll")
        a(f"buffer_load_dwordx2 v[{VPO}:{VPO+1}], v{VPAP}, {S(SRD_WS)}, 0 offen sc1")
        vm.issue("poll")

    def prep_poll_check():
        vm.wait("poll")
        stamp("ppw", "p")
        poll_check(VPO, VPAP)
        stamp("ppok", "p")
        a(f"""
        buffer_load_dwordx4 {vr(W,4)}, v{VU0}, {S(SRD_WS)}, s{S_KUO} offen {P["mu"]}
        buffer_load_dwordx4 {vr(W+4,4)}, v{VU1}, {S(SRD_WS)}, s{S_KUO} offen {P["mu"]}
        """)
        vm.issue("U", 2)

    def ubuf_pad():
        a(f"""
        v_mov_b32 v4, 0
        v_mov_b32 v5, 0
        v_mov_b32 v6, 0
        v_mov_b32 v7, 0
        s_mov_b64 exec, 3
        ds_write_b128 v{VPAD}, v[4:7]
        s_mov_b64 exec, -1
        """)
        lg.issue("uw")

    def ubuf_write(p):
        e = 7 - p
        aa = e >> 1
        if e & 1:
            src = (Cq + aa) if aa % 2 == 0 else (Dq + aa - 1)
        else:
            src = (W + aa) if aa % 2 == 0 else (Bq + aa - 1)
        a(f"ds_write_b128 v{VUW}, {vr(src,4)} offset:{p*UP}")
        lg.issue("uw")

    def ubuf_a():
        vm.wait("U")
        stamp("U", "p")
        ubuf_write(7); ubuf_write(3)
        for i in range(6):
            a(f"v_mov_b32 v{Bq+i}, v{W+1+i}")
        ubuf_write(5); ubuf_write(1)
    def ubuf_b():
        for i in range(6):
            a(f"v_alignbyte_b32 v{Cq+i}, v{W+i+1}, v{W+i}, 2")
        ubuf_write(6); ubuf_write(2)
        for i in range(6):
            a(f"v_alignbyte_b32 v{Dq+i}, v{W+i+2}, v{W+i+1}, 2")
        ubuf_write(4); ubuf_write(0)

    def act_poll_issue():
        a(f"buffer_load_dwordx2 v[6:7], v{VPAA}, {S(SRD_WS)}, 0 offen sc1")
        vm.issue("poll")

    def act_flag():
        vm.wait("act3")
        stamp("fl", "f")
        flag_store(S_FAO)

    kvb = P["kvbar"]
    ltb = P["ltbar"]
    assert kvb in (0, 2, 6, 10, 14) and ltb in (2, 6, 10, 14, 18, 22) and ltb > kvb
    if "kv" not in PRO:
        assert P["kv_at"] < kvb
        at(P["kv_at"], kv_loads)
    rest = [nm for nm in ("prep", "flags", "kz", "tbl", "k", "poll", "act", "conv", "apoll", "tail", "y", "ep", "w2a", "aload") if nm not in PRO]
    def push_ad(nm):
        fq.push(ADS0[nm], nm, gate=(lambda: "kv" in done) if nm in ("aload",) else None, hard=True)
    npre = P["fpre"]
    if "prep" in rest:
        npre = max(npre, 1)
    pre = rest[:npre]; rest = rest[npre:]
    assert "w2a" not in pre and "aload" not in pre
    for nm in pre:
        push_ad(nm)
    fq.push(prep_a, "pa", gate=lambda: cur[0] >= (-1 if kvb == 0 else kvb + 0.5), hard=True)
    fq.push(prep_b, "pb")
    fq.push(prep_c, "ltw")
    if "w2a" in rest:
        rest.remove("w2a"); rest.insert(0, "w2a")
        if "tbl" in rest:
            rest.remove("tbl"); rest.insert(0, "tbl")
    for nm in rest:
        push_ad(nm)
    fq.push(ubuf_pad, "pad", gate=lambda: cur[0] >= 18.5, hard=True)

    dma = {n: [] for n in range(28)}
    for t in range(1, 4):
        if f"c{t}" not in PRO:
            for i in range(4):
                dma[int(CS[t][i])].append((t, i))
    for t in range(4, 7):
        for i in range(4):
            dma[4 * (t - 4) + P["c4d"] + i].append((t, i))
    for n in range(28):
        for (t, i) in dma[n]:
            at(n, lambda t=t, i=i: chunk_part(t, i))
    at(ltb, kvt_store)
    pf = P["pflag"]
    assert ltb < pf < P["poll_at"] < P["pchk"] < P["ua_at"] <= P["ub_at"] and P["ua_at"] >= 19
    assert P["np_at"] < P["wchk"]
    at(P["np_at"], w2_poll_issue)
    at(P["wchk"], w2_poll_check)
    at(pf, prep_flag)
    at(P["k_at"], kbuf_dma)
    at(P["poll_at"], prep_poll_issue)
    at(P["pchk"], prep_poll_check)
    at(P["ua_at"], ubuf_a)
    at(P["ub_at"], ubuf_b)
    at(40 + P["fa_at"], act_flag)
    at(40 + P["ap_at"], act_poll_issue)

    def reads(n):
        t, ks = n >> 2, n & 3
        base = SA[t & 3]
        win = base >= 65536
        off = base - (65536 if win else 0)
        fb = FR + 12 * (n % 3)
        vb = (VBB if win else VBA) + ks
        va = VAB if win else VAA
        a(f"ds_read_b128 {vr(fb+8,4)}, v{vb} offset:{off}")
        for ft in range(2):
            for part in range(2):
                a(f"ds_read_b64_tr_b16 {vr(fb+4*ft+2*part,2)}, v{va+ft} offset:{off+16384+4096*ks+1024*part}")
        lg.issue(f"r{n}", 5)

    vm.wait("c0")
    if kvb == 0:
        vm.wait("kv0")
    lg.wait_all()
    a("s_barrier")
    stamp("g1s")
    cur[0] = -1
    reads(0)
    reads(1)
    for n in range(28):
        fb = FR + 12 * (n % 3)
        bar = ((n + 2) & 3) == 0 and n + 2 < 28
        cur[0] = n
        lg.wait(f"r{n}")
        a(f"v_mfma_f32_32x32x16_bf16 {vr(ACC1,16)}, {vr(fb,4)}, {vr(fb+8,4)}, {vr(ACC1,16)}")
        if bar:
            t1 = (n + 2) >> 2
            if n == ltb:
                fq.drain("ltw")
            lg.wait_all()
            vm.wait(f"c{t1}")
            if n == kvb:
                vm.wait("kv0")
            a("s_barrier")
            stamp(f"n{n}", "g")
            if n == ltb:
                kvt_read()
        cur[0] = n + 0.5
        if n + 2 < 28:
            reads(n + 2)
        fq.emit(P["b1"] + (5 if n + 2 >= 28 else 0))
        a(f"v_mfma_f32_32x32x16_bf16 {vr(ACC1+16,16)}, {vr(fb+4,4)}, {vr(fb+8,4)}, {vr(ACC1+16,16)}")
        used = fire(n)
        cur[0] = n + 0.75
        fq.emit(P["b2"] - used)
    fq.drain("pad")
    stamp("g1e")
    if "endg1" in XP:
        a("s_branch L_xend")

    fill = []
    def mop(s, kind="v"):
        fill.append((s, kind))
    for grp in range(4):
        hb = ACC1 + 8 * grp
        for half in range(2):
            h0 = hb + 4 * half
            E, U_ = MT, MT + 4
            for e in (0, 2):
                mop(f"v_pk_mul_f32 {vr(E+e,2)}, {vr(h0+e,2)}, s[{S_LOG}:{S_LOG+1}] op_sel_hi:[1,0]")
            for e in range(4):
                mop(f"v_exp_f32 v{E+e}, v{E+e}")
            for e in (0, 2):
                mop(f"v_pk_fma_f32 {vr(U_+e,2)}, {vr(E+e,2)}, 0.5, 1.0 op_sel_hi:[1,0,0]")
            for e in (0, 2):
                mop(f"v_pk_fma_f32 {vr(E+e,2)}, {vr(E+e,2)}, {vr(U_+e,2)}, 1.0 op_sel_hi:[1,1,0]")
            for e in range(4):
                mop(f"v_rcp_f32 v{E+e}, v{E+e}")
            for e in (0, 2):
                mop(f"v_pk_fma_f32 {vr(h0+e,2)}, {vr(h0+e,2)}, {vr(E+e,2)}, {vr(h0+e,2)} neg_lo:[1,0,0] neg_hi:[1,0,0]")
        for e2 in range(4):
            mop(f"v_cvt_pk_bf16_f32 v{hb+e2}, v{hb+2*e2}, v{hb+2*e2+1}")
        mop(f"buffer_store_dwordx4 {vr(hb,4)}, v{VL16}, {S(SRD_WS)}, s{S_AB} offen offset:{1024*grp} sc1", f"act{grp}")
    NMISH = len(fill)
    GL = NMISH // 4
    mi = [0]
    def emit_fill(k):
        while k > 0 and mi[0] < NMISH:
            s, kind = fill[mi[0]]
            a(s)
            k -= 1
            if kind != "v":
                vm.issue(kind)
            mi[0] += 1

    ACC2 = 80
    TK = P["tailk"]
    PIECES = [(sl, st) for sl in range(7 - TK) for st in range(4)] + [(sl, st) for st in range(4) for sl in range(7 - TK, 7)]
    LOC = {}
    for i in range(28):
        if i < 8:
            LOC[i] = ("d", 32 + 4 * i)
        elif i < 16:
            LOC[i] = ("lo", 1024 * (i - 8))
        elif i < 18:
            LOC[i] = ("d", 32 + 4 * (i - 8))
        elif i < 26:
            LOC[i] = ("hi", 1024 * (i - 18))
        else:
            LOC[i] = ("x", 1024 * (i - 26))
    STG_I = [i for i in range(28) if LOC[i][0] != "d"]
    SLOT = {i: LOC[i][1] for i in range(28) if LOC[i][0] == "d"}
    PREV = {}
    lastuse = {32 + 4 * k: k for k in range(8)}
    for n_, i in enumerate(STG_I):
        r = 32 + 4 * (n_ % 8)
        SLOT[i] = r
        PREV[i] = lastuse[r]
        lastuse[r] = i
    acked = [0]
    def act_check():
        vm.wait("poll")
        stamp("apw", "2")
        a(f"""
        v_cmp_ne_u64 s[{S_CMP}:{S_CMP+1}], s[{S_NON}:{S_NON+1}], v[6:7]
        s_cmp_eq_u64 s[{S_CMP}:{S_CMP+1}], 0
        s_cselect_b32 s{SRD_ACT+2}, s{SRD_ACT+2}, 0
        """)
        acked[0] = 1
    nld = [0]
    def actload(i):
        sl, st = PIECES[i]
        va = VAL2 if st >> 1 else VAL
        kind, off = LOC[i]
        o = 256 * (st & 1)
        if kind == "d":
            a(f"buffer_load_dwordx4 {vr(off,4)}, v{va}, {S(SRD_ACT)}, s{ASL[sl]} offen offset:{o} {P['mal']}")
        else:
            if P["mo"]:
                mo = off - o + (65536 if kind == "hi" else 0)
                if kind != "x":
                    assert mo >= 0
                a(f"""
                s_add_u32 m0, s{S_STX if kind == "x" else S_STG}, {mo & 0xffffffff}
                s_nop 0
                buffer_load_dwordx4 v{va}, {S(SRD_ACT)}, s{ASL[sl]} offen offset:{o} {P['mal']} lds
                """)
            else:
                a(f"""
                s_add_u32 m0, s{S_STX if kind == "x" else S_STG}, {off + (65536 if kind == "hi" else 0)}
                s_add_u32 s{S_T0}, s{ASL[sl]}, {o}
                buffer_load_dwordx4 v{va}, {S(SRD_ACT)}, s{S_T0} offen {P['mal']} lds
                """)
        vm.issue(f"a{i}")
    def act_next(lim):
        assert acked[0]
        if nld[0] < lim:
            actload(nld[0])
            nld[0] += 1
    if P["ac_at"] < 72:
        assert P["ac_at"] > P["ap_at"]
        at(40 + P["ac_at"], act_check)
        for k in range(16):
            pt = P["ac_at"] + int(k * P["acs"] / 10)
            at(40 + min(pt, 71), lambda: act_next(16))

    a("s_nop 7\ns_nop 7")
    for k in range(8):
        emit_fill((GL + 1) // 2 if k % 2 == 0 else GL // 2)
        fire(28 + k)
    assert mi[0] == NMISH
    for pt in range(36, 40):
        fire(pt)
    vm.wait("K")
    lg.wait_all()
    stamp("cvb", "p")
    a("s_barrier")
    stamp("cvs")

    CACC = 124
    POOL = [100 + 4 * i for i in range(6)] + [80 + 4 * i for i in range(5)]
    RSETS = [[0, 1, 6, 7], [2, 3, 4, 5]]
    lab_rs1 = a.newlabel("L_cv_rs1")
    lab_join = a.newlabel("L_cv_join")
    a(f"""
    s_bitcmp1_b32 s{S_WAVE}, 0
    s_cbranch_scc1 {lab_rs1}
    """)
    sv = (vm.save(), lg.save(), nst[0], w2i[0], nld[0], acked[0], fq.save())
    for rs in range(2):
        if rs == 1:
            a.label(lab_rs1)
            vm.load(sv[0]); lg.load(sv[1]); nst[0] = sv[2]; w2i[0] = sv[3]; nld[0] = sv[4]; acked[0] = sv[5]; fq.load(sv[6])
        tacc = 0
        rset = RSETS[rs]
        rmax = max(rset)
        seq = []
        for rp in range(4):
            order = range(rmax + 1) if rp % 2 == 0 else range(rmax, -1, -1)
            for b in order:
                for ri, r in enumerate(rset):
                    if r >= b:
                        seq.append((rp, ri, ("A", rp, b), ("B", rp, r - b)))
        last = {}
        firstorder = []
        for i, (rp, ri, fa, fbk) in enumerate(seq):
            for f in (fa, fbk):
                if f not in last:
                    firstorder.append(f)
                last[f] = i
        free = list(POOL)
        loc = {}
        nxt = [0]
        def issue_loads():
            while nxt[0] < len(firstorder) and free:
                f = firstorder[nxt[0]]
                reg = free.pop(0)
                loc[f] = reg
                if f[0] == "A":
                    a(f"ds_read_b128 {vr(reg,4)}, v{VA} offset:{64*(59-8*f[2]-f[1])}")
                else:
                    a(f"ds_read_b128 {vr(reg,4)}, v{VBk} offset:{64*(8*f[2]+3-f[1])}")
                lg.issue(f)
                nxt[0] += 1
        started = set()
        issue_loads()
        for i, (rp, ri, fa, fbk) in enumerate(seq):
            assert fa in loc and fbk in loc, (i, fa, fbk)
            lg.wait(fa); lg.wait(fbk)
            c = vr(CACC + 4 * ri, 4) if ri in started else "0"
            started.add(ri)
            a(f"v_mfma_f32_16x16x32_bf16 {vr(CACC+4*ri,4)}, {vr(loc[fa],4)}, {vr(loc[fbk],4)}, {c}")
            for f in (fa, fbk):
                if last[f] == i and loc[f] not in free:
                    free.append(loc[f])
            issue_loads()
            used = fire(40 + i)
            if i >= P["cst"]:
                tacc += P["cper"] - 10 * used
                if tacc >= 10:
                    n0 = len(a.lines)
                    fq.emit(tacc // 10)
                    tacc -= 10 * (len(a.lines) - n0)
                tacc = min(tacc, 20)
        for pt in range(40 + len(seq), 200):
            fire(pt)
        cur[0] = 112
        w2_emit(28)
        if rs == 0:
            a(f"s_branch {lab_join}")
            end0 = (vm.save(), w2i[0], nst[0], len(fq.q), nld[0])
        else:
            assert end0 == (vm.save(), w2i[0], nst[0], len(fq.q), nld[0]), (end0, (vm.save(), w2i[0], nst[0], len(fq.q), nld[0]))
    a.label(lab_join)
    lg.alts = [["x"] * 15]
    stamp("cve")

    lab_cs1 = a.newlabel("L_cv_cs1")
    lab_j2 = a.newlabel("L_cv_j2")
    TT = 80
    a(f"""
    ds_read_b64 v[{TT+8}:{TT+9}], v{VKR1} offset:512
    ds_read_b64 v[{TT+10}:{TT+11}], v{VKR1}
    s_bitcmp1_b32 s{S_WAVE}, 1
    s_nop 3
    s_cbranch_scc1 {lab_cs1}
    ds_write_b128 v{VXW}, {vr(CACC+8,4)}
    ds_write_b128 v{VXW}, {vr(CACC+12,4)} offset:1024
    s_branch {lab_j2}
    """)
    a.label(lab_cs1)
    a(f"""
    ds_write_b128 v{VXW}, {vr(CACC,4)}
    ds_write_b128 v{VXW}, {vr(CACC+4,4)} offset:1024
    s_nop 1
    """)
    for i in range(8):
        a(f"v_mov_b32 v{CACC+i}, v{CACC+8+i}")
    a.label(lab_j2)
    a("s_waitcnt lgkmcnt(2)")
    for ri in range(2):
        kvr = TT + 8 + 2 * ri
        a(f"""
        v_and_b32 v{TT+16+4*ri}, 0xffff0000, v{kvr+1}
        v_lshlrev_b32 v{TT+17+4*ri}, 16, v{kvr+1}
        v_and_b32 v{TT+18+4*ri}, 0xffff0000, v{kvr}
        v_lshlrev_b32 v{TT+19+4*ri}, 16, v{kvr}
        """)
    a(f"""
    s_waitcnt lgkmcnt(0)
    s_barrier
    ds_read_b128 {vr(TT,4)}, v{VSTX} offset:{XB - EXTRA}
    ds_read_b128 {vr(TT+4,4)}, v{VSTX} offset:{XB - EXTRA + 1024}
    """)
    lg.clear()
    lg.issue("xr", 2)
    R = TT + 12
    for ri in range(2):
        for j in range(4):
            a(f"v_fmac_f32 v{CACC+4*ri+j}, s{S_DV}, v{TT+16+4*ri+j}")
    VSTH = VA
    a(f"v_add_u32 v{VSTH}, 0x10000, v{VSTG}")
    lg.wait("xr")
    for ri in range(2):
        for j in range(4):
            a(f"v_add_f32 v{CACC+4*ri+j}, v{CACC+4*ri+j}, v{TT+4*ri+j}")
        a(f"v_cvt_pk_bf16_f32 v{R+2*ri}, v{CACC+4*ri}, v{CACC+4*ri+1}")
        a(f"v_cvt_pk_bf16_f32 v{R+2*ri+1}, v{CACC+4*ri+2}, v{CACC+4*ri+3}")
    a(f"""
    s_nop 1
    v_permlane16_swap_b32 v{R}, v{R+2}
    v_permlane16_swap_b32 v{R+1}, v{R+3}
    s_nop 1
    buffer_store_dwordx4 v[{R}:{R+3}], v{VYS}, {S(SRD_WS)}, s{S_YSO} offen sc1
    """)
    vm.issue("yst")
    stamp("yst", "2")

    def yflag():
        vm.wait("yst")
        flag_store(S_FYO)

    fq.drain()
    stamp("tpre", "2")
    if not acked[0]:
        act_check()
    for _ in range(P["apost"]):
        act_next(28)
    lab_fast = a.newlabel("L_apfast")
    a(f"""
    s_cmp_lg_u32 s{SRD_ACT+2}, 0
    s_cbranch_scc1 {lab_fast}
    """)
    sv = vm.save()
    yflag()
    a(f"s_mov_b32 s{S_YD}, 1")
    poll_check(6, VPAA)
    a(f"s_mov_b32 s{SRD_ACT+2}, {WS_SIZE}")
    for i in range(nld[0]):
        actload(i)
    vm.merge(sv)
    a.label(lab_fast)
    stamp("apok")
    VYD, VQ = 72, 76
    GQ, VY8, VYRB = 144, 152, 160

    def ypoll_issue():
        a(f"buffer_load_dwordx2 v[6:7], v{VPAY}, {S(SRD_WS)}, 0 offen sc1")
        vm.issue("poll")

    def ep_loads():
        a(f"""
        buffer_load_dwordx2 {vr(VQ,2)}, v{VOUT}, {S(SRD_Q)}, 0 offen
        buffer_load_dwordx2 {vr(VQ+2,2)}, v{VOUT}, {S(SRD_Q)}, 0 offen offset:16
        buffer_load_dword v{VGA}, v{VGA}, {S(SRD_WS)}, 0 offen sc1
        """)
        vm.issue("q", 3)

    def yflag_cond():
        l_skip = a.newlabel("L_yfs")
        a(f"""
        s_cmp_lg_u32 s{S_YD}, 0
        s_cbranch_scc1 {l_skip}
        """)
        sv = vm.save()
        yflag()
        vm.merge(sv)
        a.label(l_skip)
        stamp("yfl", "2")

    def ep_regs():
        for e in range(8):
            a(f"v_mov_b32 v{VY8+e}, 0")
        a(f"""
        v_xor_b32 v{VYRB}, 16, v{VYRA}
        v_add_u32 v{VYRB}, 2048, v{VYRB}
        """)

    started2 = set()
    pw = []
    rd_done = set()
    def pwrite(reg):
        st, dt, j = reg >> 4, (reg >> 2) & 3, reg & 3
        row = (st * 4 + j) * 4 + dt
        lo = row < 32
        for i in STG_I:
            kind, off = LOC[i]
            if kind == ("lo" if lo else "hi") and off // 4096 == (st & 1):
                assert i in rd_done, "partial write over unread staged piece"
        if not pw or pw[-1] != lo:
            a(f"s_add_u32 m0, s{S_STG}, {0 if lo else 7940}")
            a("s_nop 0")
            pw.append(lo)
        off = row * 256 if lo else 57596 + (row - 32) * 256
        a(f"ds_write_addtid_b32 v{ACC2+reg} offset:{off}")
        lg.issue("pw")

    def stage_read(i):
        kind, off = LOC[i]
        vm.wait(f"a{i}")
        a(f"ds_read_b128 {vr(SLOT[i],4)}, v{dict(lo=VSTG, hi=VSTH, x=VSTX)[kind]} offset:{off}")
        lg.issue(f"s{i}")
        rd_done.add(i)

    def yload():
        a(f"buffer_load_dwordx4 {vr(VYD,4)}, v{VYA}, {S(SRD_WS)}, s{S_YLO} offen {P['my']}")
        vm.issue("y")

    def ycheck_fast():
        vm.wait("poll")
        stamp("ypw", "2")
        l_skip = a.newlabel("L_ycs")
        a(f"""
        v_cmp_ne_u64 s[{S_CMP}:{S_CMP+1}], s[{S_NON}:{S_NON+1}], v[6:7]
        s_mov_b32 s{S_YD}, 0
        s_cmp_lg_u64 s[{S_CMP}:{S_CMP+1}], 0
        s_cbranch_scc1 {l_skip}
        s_mov_b32 s{S_YD}, 1
        """)
        sv = vm.save()
        yload()
        vm.merge(sv)
        a.label(l_skip)

    pend_w = []
    LAG = P["lag"]
    IL = P["il"]
    nrd = [0]
    def process(i):
        sl, st = PIECES[i]
        while nrd[0] < len(STG_I) and STG_I[nrd[0]] <= i + LAG and PREV[STG_I[nrd[0]]] < i and STG_I[nrd[0]] < nld[0]:
            stage_read(STG_I[nrd[0]]); nrd[0] += 1
        vm.wait(f"w{sl}")
        if LOC[i][0] == "d":
            vm.wait(f"a{i}")
        else:
            assert i in rd_done
            lg.wait(f"s{i}")
        if i in (0, 4, 9, 12, 16, 20, 24, 27):
            stamp(f"a{i}", "2")
        for dt in range(4):
            ac = ACC2 + 16 * st + 4 * dt
            c = vr(ac, 4) if (st, dt) in started2 else "0"
            started2.add((st, dt))
            a(f"v_mfma_f32_16x16x32_bf16 {vr(ac,4)}, {vr(SLOT[i],4)}, {vr(FRAG[(sl,dt)],4)}, {c}")
            for _ in range(P["pwper"]):
                if pend_w and (dt >= 2 or pend_w[0][1] < i - 1):
                    pwrite(pend_w.pop(0)[0])
            fq.emit(P["g2per"])
        if i == 8:
            fq.push(ep_regs, "epr")
        if i == P["yc_at"]:
            ycheck_fast()
        if sl == 6:
            for r in range(16):
                pend_w.append((16 * st + r, i))
    a("s_nop 1")
    for j in range(28 + IL):
        if j == P["yp_at"]:
            ypoll_issue()
        if j < 28 and j >= nld[0]:
            act_next(28)
            pw.clear()
        if j == P["yf_at"]:
            yflag_cond()
        if j == P["epl_at"]:
            ep_loads()
        if j == 27:
            stamp("ald", "2")
        if j == IL:
            stamp("g2s")
        if j >= IL:
            process(j - IL)
    assert P["yc_at"] < 28 and P["yp_at"] <= P["yc_at"] + IL and P["yf_at"] < P["yc_at"] + IL
    fq.drain()
    stamp("g2e")
    l_yok = a.newlabel("L_yok")
    a(f"""
    s_cmp_lg_u32 s{S_YD}, 0
    s_cbranch_scc1 {l_yok}
    """)
    sv = vm.save()
    poll_check(6, VPAY)
    yload()
    vm.merge(sv)
    a.label(l_yok)
    a("s_nop 3")
    while pend_w:
        pwrite(pend_w.pop(0)[0])
    VOMG = 2
    VG = VGA
    vm.wait("q")
    a(f"""
    v_sub_f32 v{VOMG}, 1.0, v{VG}
    v_cvt_pk_bf16_f32 v{VOMG}, v{VOMG}, v{VOMG}
    v_lshlrev_b32 v{VOMG}, 16, v{VOMG}
    """)
    for d in range(4):
        a(f"""
        v_lshlrev_b32 v{GQ+2*d}, 16, v{VQ+d}
        v_and_b32 v{GQ+2*d+1}, 0xffff0000, v{VQ+d}
        """)
    vm.wait("y")
    stamp("yw", "2")
    a(f"ds_write_b128 v{VYW}, {vr(VYD,4)}")
    lg.wait_all()
    stamp("fb", "2")
    a("s_barrier")
    stamp("fin")
    for e in range(8):
        a(f"ds_read_u16_d16_hi v{VY8+e}, v{VYRA if e < 4 else VYRB} offset:{128*(e&3)}")
    lg.issue("yr", 8)
    RD = 80
    for wv in range(8):
        for dt in range(4):
            a(f"ds_read_b64 {vr(RD+8*wv+2*dt,2)}, v{VPR} offset:{dt*256 + wv*8192}")
            lg.issue(f"pr{wv}")
        if wv == 1:
            lg.wait("yr")
            for e in range(8):
                a(f"v_mul_f32 v{GQ+e}, v{GQ+e}, v{VY8+e}")
            for e in range(8):
                a(f"v_mul_f32 v{GQ+e}, v{GQ+e}, v{VG}")
        if wv >= 3:
            w1_ = wv - 2
            lg.wait(f"pr{w1_}")
            for e in range(0, 8, 2):
                a(f"v_pk_add_f32 {vr(RD+e,2)}, {vr(RD+e,2)}, {vr(RD+8*w1_+e,2)}")
    for wv in range(6, 8):
        lg.wait(f"pr{wv}")
        for e in range(0, 8, 2):
            a(f"v_pk_add_f32 {vr(RD+e,2)}, {vr(RD+e,2)}, {vr(RD+8*wv+e,2)}")
    for e in range(8):
        a(f"v_fmac_f32 v{GQ+e}, v{VOMG}, v{RD + 2*(e&3) + (e>>2)}")
    for e in range(4):
        a(f"v_cvt_pk_bf16_f32 v{VQ+e}, v{GQ+2*e}, v{GQ+2*e+1}")
    a(f"""
    buffer_store_dwordx2 {vr(VQ,2)}, v{VOUT}, {S(SRD_OUT)}, 0 offen
    buffer_store_dwordx2 {vr(VQ+2,2)}, v{VOUT}, {S(SRD_OUT)}, 0 offen offset:16
    """)
    def stamp_out():
        a("s_waitcnt vmcnt(0)")
        a(f"""
        s_memrealtime s[{S_TM}:{S_TM+1}]
        s_waitcnt lgkmcnt(0)
        v_writelane_b32 v{VST}, s{S_TM}, 30
        s_lshl_b32 s{S_T0}, s2, 3
        s_add_u32 s{S_T0}, s{S_T0}, s{S_WAVE}
        s_lshl_b32 s{S_T0}, s{S_T0}, 7
        s_add_u32 s{S_T0}, s{S_T0}, {WS_STAMP}
        v_lshlrev_b32 v2, 2, v1
        v_cmp_gt_u32 vcc, 32, v1
        v_mov_b32 v3, {OOB}
        s_nop 1
        v_cndmask_b32 v2, v3, v2, vcc
        buffer_store_dword v{VST}, v2, {S(SRD_WS)}, s{S_T0} offen
        """)
    if stamps:
        stamp("st")
        a("s_waitcnt vmcnt(0)")
        stamp("end")
        a.label("L_xend")
        stamp_out()
    a.label("L_end")
    a("s_endpgm")

    a.label("L_helper")
    vm.clear(); lg.clear()
    mainnames = dict(names); nmain = nst[0]
    nst[0] = 0
    GX, GWR, GT = 128, 160, 168
    S_H, S_HW, S_B, S_B2 = 10, 11, 12, 13
    HPL, HPH, HMSK = 93, 94, 100
    RAW, HFR = 32, 64
    a(f"""
    s_sub_u32 s{S_H}, s2, {NWG}
    """)
    if P["hmap"]:
        a(f"""
        s_and_b32 s{S_T4}, s{S_H}, 7
        s_lshl_b32 s{S_T4}, s{S_T4}, 2
        s_lshr_b32 s{S_H}, s{S_H}, 3
        s_add_u32 s{S_H}, s{S_H}, s{S_T4}
        """)
    a(f"""
    s_lshl_b32 s{S_HW}, s{S_H}, 3
    s_add_u32 s{S_HW}, s{S_HW}, s{S_WAVE}
    v_lshrrev_b32 v2, 5, v1
    v_bfe_u32 v3, v1, 4, 1
    v_lshlrev_b32 v2, 4, v2
    v_lshl_add_u32 v2, v3, 2, v2
    v_bfe_u32 v3, v1, 3, 1
    v_lshl_add_u32 v2, v3, 3, v2
    v_mul_u32_u24 v2, 896, v2
    v_and_b32 v3, 7, v1
    v_lshl_add_u32 v{VW2G}, v3, 4, v2
    v_lshlrev_b32 v{VL16}, 4, v1
    s_lshl_b32 s{S_B}, s{S_WAVE}, 5
    s_add_u32 s{S_B}, s{S_B}, s{S_H}
    s_add_u32 s{S_B2}, s{S_B}, 256
    s_mov_b32 s{HPL}, 0x05040100
    s_mov_b32 s{HPH}, 0x07060302
    s_mov_b32 s{HMSK}, 0x00ff00ff
    s_mov_b32 s{HMSK+1}, 0x00ff00ff
    v_lshlrev_b32 v12, 20, v1
    s_waitcnt lgkmcnt(0)
    """)
    srd(SRD_W2, "w2"); srd(SRD_WS, "ws")
    stamp_init()
    stamp("hs")
    for _ in range(P["hdel"]):
        a("s_sleep 8")
    def w2raw(n, sb):
        a(f"""
        s_mul_i32 s{S_T0}, s{sb}, 1171
        s_lshr_b32 s{S_T0}, s{S_T0}, 16
        s_mul_i32 s{S_T1}, s{S_T0}, 56
        s_sub_u32 s{S_T1}, s{sb}, s{S_T1}
        s_mul_i32 s{S_T1}, s{S_T1}, {32*896}
        s_lshl_b32 s{S_T0}, s{S_T0}, 7
        s_add_u32 s{S_T0}, s{S_T0}, s{S_T1}
        """)
        for j in range(4):
            a(f"buffer_load_dwordx4 {vr(RAW+16*n+4*j,4)}, v{VW2G}, {S(SRD_W2)}, s{S_T0} offen offset:{896*j}{NTH}")
        vm.issue(f"hw{n}", 4)
    def tblock(B, F, vtmp):
        lo, hi = {}, {}
        dst = vtmp
        a(f"s_mov_b64 vcc, s[{HMSK}:{HMSK+1}]")
        for j in range(4):
            for r in range(2):
                X, Y = B + 4 * j + r, B + 4 * j + r + 2
                a(f"v_cndmask_b32_dpp v{dst}, v{Y}, v{X}, vcc row_ror:8 row_mask:0xf bank_mask:0xf")
                a(f"v_mov_b32_dpp v{Y}, v{X} row_ror:8 row_mask:0xf bank_mask:0x3")
                lo[(j, r)] = dst; hi[(j, r)] = Y
                dst = X
        def src(i, r):
            return lo[(i, r)] if i < 4 else hi[(i - 4, r)]
        for r in range(2):
            for pp in range(2):
                for jj in range(4):
                    a(f"v_perm_b32 v{F+4*(2*r+pp)+jj}, v{src(2*jj+1, r)}, v{src(2*jj, r)}, s{HPH if pp else HPL}")
    def w2store(F, sb, tag):
        a(f"""
        s_lshl_b32 s{S_T0}, s{sb}, 12
        s_add_u32 s{S_T0}, s{S_T0}, {WS_W2T}
        """)
        for dt in range(4):
            a(f"buffer_store_dwordx4 {vr(F+4*dt,4)}, v{VL16}, {S(SRD_WS)}, s{S_T0} offen offset:{1024*dt} sc1")
        vm.issue(tag, 4)
    def w2flag(sb):
        a(f"""
        s_lshl_b32 s{S_T0}, s{sb}, 7
        s_add_u32 s{S_T0}, s{S_T0}, {FW}
        """)
        flag_store(S_T0)

    def hcommon():
        if P["htlb"]:
            srd(SRD_OUT, "out"); srd(SRD_SK, "sk")
            a(f"""
            buffer_load_dword v13, v12, {S(SRD_WS)}, 0 offen
            buffer_load_dword v14, v12, {S(SRD_OUT)}, 0 offen
            buffer_load_dword v15, v12, {S(SRD_SK)}, 0 offen
            """)
            vm.issue("tlb", 3)
        srd(SRD_DBG, "dbg"); srd(SRD_Q, "q"); srd(SRD_GW, "gw")
        vfl_setup()
        a(f"s_mov_b32 s{S_SPIN}, 20000")
    def gate_loads():
        a(f"""
        v_lshrrev_b32 v2, 5, v1
        s_lshl_b32 s{S_T0}, s{S_HW}, 3
        v_add_u32 v9, s{S_T0}, v2
        v_mul_u32_u24 v2, 896, v9
        v_and_b32 v3, 31, v1
        v_lshlrev_b32 v4, 4, v3
        v_cmp_gt_u32 vcc, 28, v3
        v_add_u32 v2, v2, v4
        v_mov_b32 v7, {OOB}
        v_cndmask_b32 v18, v7, v2, vcc
        v_cndmask_b32 v19, v7, v4, vcc
        buffer_load_dwordx4 {vr(GWR,4)}, v19, {S(SRD_GW)}, 0 offen
        buffer_load_dwordx4 {vr(GWR+4,4)}, v19, {S(SRD_GW)}, 0 offen offset:448
        """)
        for p in range(4):
            a(f"""
            s_mov_b32 s{S_T0}, {p*2*896}
            buffer_load_dwordx4 {vr(GX+8*p,4)}, v18, {S(SRD_Q)}, s{S_T0} offen{NTG}
            buffer_load_dwordx4 {vr(GX+8*p+4,4)}, v18, {S(SRD_Q)}, s{S_T0} offen offset:448{NTG}
            """)
        vm.issue("g", 10)

    w2raw(0, S_B)
    a(f"""
    s_cmp_lt_u32 s{S_B2}, 392
    s_cbranch_scc1 L_h2
    """)
    sv2 = (vm.save(), nst[0])
    hcommon()
    vm.wait("hw0")
    stamp("hw")
    nonce_load()
    tblock(RAW, HFR, 16)
    w2store(HFR, S_B, "ws0")
    nonce_check()
    vm.wait("ws0")
    stamp("hwa")
    w2flag(S_B)
    a("s_branch L_hgate")
    end1 = (vm.save(), nst[0])
    a.label("L_h2")
    vm.load(sv2[0]); nst[0] = sv2[1]
    w2raw(1, S_B2)
    hcommon()
    vm.wait("hw0")
    stamp("hw")
    nonce_load()
    tblock(RAW, HFR, 16)
    w2store(HFR, S_B, "ws0")
    vm.wait("hw1")
    tblock(RAW + 16, HFR + 16, 16)
    w2store(HFR + 16, S_B2, "ws1")
    nonce_check()
    vm.wait("ws0")
    w2flag(S_B)
    vm.wait("ws1")
    stamp("hwa")
    w2flag(S_B2)
    assert nst[0] == end1[1]
    vm.merge(end1[0])
    a.label("L_hgate")
    gate_loads()
    a(f"""
    s_lshl_b32 s{S_T1}, s{S_HW}, 7
    s_add_u32 s{S_FPO}, s{S_T1}, {FH}
    v_lshl_add_u32 v2, v3, 1, v9
    v_lshlrev_b32 v2, 2, v2
    v_add_u32 v2, {WS_G}, v2
    v_cmp_gt_u32 vcc, 4, v3
    s_nop 1
    v_cndmask_b32 v17, v7, v2, vcc
    """)
    vm.wait("g")
    stamp("hg")
    for p in range(4):
        for d in range(4):
            a(f"v_dot2_f32_bf16 v{GT+4*p+d}, v{GX+8*p+d}, v{GWR+d}, 0")
    for p in range(4):
        for d in range(4):
            a(f"v_dot2_f32_bf16 v{GT+4*p+d}, v{GX+8*p+4+d}, v{GWR+4+d}, v{GT+4*p+d}")
    a("s_nop 2")
    for p in range(4):
        a(f"v_add_f32 v{GT+4*p}, v{GT+4*p}, v{GT+4*p+1}")
        a(f"v_add_f32 v{GT+4*p+2}, v{GT+4*p+2}, v{GT+4*p+3}")
    for p in range(4):
        a(f"v_add_f32 v{GT+4*p}, v{GT+4*p}, v{GT+4*p+2}")
    for m in ("quad_perm:[1,0,3,2]", "quad_perm:[2,3,0,1]", "row_half_mirror", "row_mirror"):
        for p in range(4):
            a(f"v_add_f32_dpp v{GT+4*p}, v{GT+4*p}, v{GT+4*p} {m} row_mask:0xf bank_mask:0xf")
    for p in range(4):
        a(f"v_mov_b32 v{GT+4*p+1}, v{GT+4*p}")
    a("s_nop 1")
    for p in range(4):
        a(f"v_permlane16_swap_b32 v{GT+4*p}, v{GT+4*p+1}")
    a("s_nop 1")
    for p in range(4):
        a(f"v_add_f32 v{GT+4*p}, v{GT+4*p}, v{GT+4*p+1}")
    for p in range(1, 4):
        a(f"""
        v_cmp_eq_u32 vcc, {p}, v3
        s_nop 1
        v_cndmask_b32 v{GT}, v{GT}, v{GT+4*p}, vcc
        """)
    a(f"""
    v_cvt_pk_bf16_f32 v{GT}, v{GT}, v{GT}
    v_lshlrev_b32 v{GT}, 16, v{GT}
    v_mul_f32 v{GT}, 0xbfb8aa3b, v{GT}
    v_exp_f32 v{GT}, v{GT}
    s_nop 0
    v_add_f32 v{GT}, 1.0, v{GT}
    v_rcp_f32 v{GT}, v{GT}
    s_nop 0
    v_cvt_pk_bf16_f32 v{GT}, v{GT}, v{GT}
    v_lshlrev_b32 v{GT}, 16, v{GT}
    buffer_store_dword v{GT}, v17, {S(SRD_WS)}, 0 offen sc1
    """)
    vm.issue("gst")
    vm.wait("gst")
    stamp("hf")
    flag_store(S_FPO)
    if stamps:
        stamp_out()
    a("s_endpgm")
    a.label("L_codeend")
    names = mainnames

    hdr = f"; @launch grid=({NWG + NH},1,1) block=(512,1,1) lds={LDS_END}\n"
    if stamps:
        hdr += "; STAMPS " + " ".join(f"{names[i]}" for i in range(nmain)) + "\n"
    hdr += "; PARAMS " + " ".join(x for x in sys.argv[2:]) + "\n"
    out = hdr + '.amdgcn_target "amdgcn-amd-amdhsa--gfx950"\n.text\n' + a.text()
    out += '.section .rodata,"a"\n' + kd(NAME, 256)
    return out


if __name__ == "__main__":
    st = "stamps" in sys.argv[2:]
    for x in sys.argv[2:]:
        if "=" in x:
            k, v = x.split("=")
            assert k in P, k
            P[k] = v if isinstance(P[k], str) else int(v)
    open(sys.argv[1], "w").write(gen(st))
```
